```python
import torch

def _softmax(x, axis=-1):
    return torch.softmax(x, dim=axis)
def _gelu(x):
    return torch.nn.functional.gelu(x, approximate="tanh")
def _silu(x):
    return torch.nn.functional.silu(x)
def _sigmoid(x):
    return torch.sigmoid(x)
def _layernorm(x, axis=-1, eps=1e-5):
    m = x.mean(dim=axis, keepdim=True)
    v = x.var(dim=axis, keepdim=True, unbiased=False)
    return (x - m) / torch.sqrt(v + eps)
def _scatter_add(tgt, idx, src, axis=0):
    return tgt.clone().index_add_(axis, idx, src)
def _segment_sum(src, seg, n):
    out = torch.zeros((n,) + src.shape[1:], dtype=src.dtype)
    return out.index_add_(0, seg, src)
def _pad(x, pw):
    flat = tuple(v for pair in reversed(pw) for v in pair)
    return torch.nn.functional.pad(x, flat)

kernel_name = 'gated_mix__ssm_conv_h3__ssm_conv_s4__prompt'

def setup_inputs():

    _w = (lambda a: (lambda t: t.to(torch.bfloat16) if t.is_floating_point() else t)(torch.as_tensor(a)))
    def _A_setup():
        B, S, D = 1, 2048, 512
        ks = 4
        return {
            "q": _w((lambda *s: torch.randn(*s, dtype=torch.bfloat16) * 0.05)(B, S, D)),
            "k": _w((lambda *s: torch.randn(*s, dtype=torch.bfloat16) * 0.4)(B, S, D)),
            "v": _w((lambda *s: torch.randn(*s, dtype=torch.bfloat16) * 0.2)(B, S, D)),
            "shift_k": _w((lambda *s: torch.randn(*s, dtype=torch.bfloat16) * 0.4)(D, ks) * 0.5),
            "ssm_k": _w((lambda *s: torch.randn(*s, dtype=torch.bfloat16) * 0.4)(D, S) * (1.0 / S ** 0.5)),
            "ssm_D": _w((lambda *s: torch.randn(*s, dtype=torch.bfloat16) * 0.2)(D)),
        }
    _A_in = _A_setup()

    def _B_setup():
        B, L, D, N = 1, 2048, 512, 128
        A_re = -(lambda _x: torch.exp(torch.as_tensor(_x)))((lambda *s: torch.randn(*s, dtype=torch.bfloat16) * 3.2)(D, N))
        A_im = torch.pi * (lambda *s: torch.randn(*s, dtype=torch.bfloat16) * 0.05)(D, N)
        B_re = (lambda *s: torch.randn(*s, dtype=torch.bfloat16) * 0.1)(D, N)
        B_im = (lambda *s: torch.randn(*s, dtype=torch.bfloat16) * 0.1)(D, N)
        C_re = (lambda *s: torch.randn(*s, dtype=torch.bfloat16) * 0.1)(D, N)
        C_im = (lambda *s: torch.randn(*s, dtype=torch.bfloat16) * 0.1)(D, N)
        log_dt = (lambda *s: torch.randn(*s, dtype=torch.bfloat16) * 0.05)(D) * 0.5 - 4.0
        Dskip = (lambda *s: torch.randn(*s, dtype=torch.bfloat16) * 0.05)(D)
        return {
            "u": _w((lambda *s: torch.randn(*s, dtype=torch.bfloat16) * 0.05)(B, L, D)),
            "A_re": _w(A_re),
            "A_im": _w(A_im),
            "B_re": _w(B_re),
            "B_im": _w(B_im),
            "C_re": _w(C_re),
            "C_im": _w(C_im),
            "log_dt": _w(log_dt),
            "Dskip": _w(Dskip),
        }
    _B_in = _B_setup()

    return {
        "A_q": _A_in["q"],
        "A_k": _A_in["k"],
        "A_v": _A_in["v"],
        "A_shift_k": _A_in["shift_k"],
        "A_ssm_k": _A_in["ssm_k"],
        "A_ssm_D": _A_in["ssm_D"],
        "B_u": _B_in["u"],
        "B_A_re": _B_in["A_re"],
        "B_A_im": _B_in["A_im"],
        "B_B_re": _B_in["B_re"],
        "B_B_im": _B_in["B_im"],
        "B_C_re": _B_in["C_re"],
        "B_C_im": _B_in["C_im"],
        "B_log_dt": _B_in["log_dt"],
        "B_Dskip": _B_in["Dskip"],
        "gate_w": _w((lambda *s: torch.randn(*s, dtype=torch.bfloat16) * 0.05)(512) * 16.0),
    }

def reference(A_q, A_k, A_v, A_shift_k, A_ssm_k, A_ssm_D, B_u, B_A_re, B_A_im, B_B_re, B_B_im, B_C_re, B_C_im, B_log_dt, B_Dskip, gate_w):
    def _A_ref(q, k, v, shift_k, ssm_k, ssm_D):
        B, S, D = q.shape
        ks = shift_k.shape[-1]
        k_pad = _pad(k, ((0, 0), (ks - 1, 0), (0, 0)))
        k_shift = torch.zeros_like(k)
        for t in range(ks):
            k_shift = k_shift + k_pad[:, t:t + S, :] * shift_k[:, ks - 1 - t][None, None, :]
        kv = k_shift * v
        L = 2 * S
        kv_pad = _pad(kv, ((0, 0), (0, S), (0, 0)))
        kf_pad = _pad(ssm_k, ((0, 0), (0, S)))
        kv_f = (lambda x, axes=(-2,-1): torch.fft.rfft2(x.float(), dim=axes))(kv_pad[:, None, :, :], axes=(1, 2))
        kf_f = (lambda x, axes=(-2,-1): torch.fft.rfft2(x.float(), dim=axes))(kf_pad[:, None, :], axes=(1, 2))
        kf_f = (lambda x, *d: x.permute(*d))(kf_f, 1, 2, 0)
        y_f = kv_f * kf_f[None, :, :, :]
        y = (lambda x, s, axes=(-2,-1): torch.fft.irfft2(x, s=s, dim=axes).to(torch.bfloat16))(y_f, (1, L), axes=(1, 2))[:, 0, :S, :]
        y = y + kv * ssm_D[None, None, :]
        return q * y

    def _B_ref(u, A_re, A_im, B_re, B_im, C_re, C_im, log_dt, Dskip):
        Bsz, L, D = u.shape
        dt = torch.exp(log_dt)[:, None]
        A = A_re + 1j * A_im
        Bc = B_re + 1j * B_im
        Cc = C_re + 1j * C_im
        logdA = dt * A
        dB = dt * Bc
        l = (lambda x, dt: x.to(dt))(torch.arange(L), A_re.dtype)
        P = torch.exp(logdA[:, :, None] * l[None, None, :])
        K = torch.einsum("dn,dnl,dn->dl", Cc, P, dB).real
        L2 = 2 * L
        Kp = _pad(K, ((0, 0), (0, L)))
        up = (lambda x, *d: x.permute(*d))(u, 0, 2, 1)
        up = _pad(up, ((0, 0), (0, 0), (0, L)))
        Kf = (lambda x, axes=(-2,-1): torch.fft.rfft2(x.float(), dim=axes))(Kp[:, None, :], axes=(-2, -1))
        Uf = (lambda x, axes=(-2,-1): torch.fft.rfft2(x.float(), dim=axes))(up[:, :, None, :], axes=(-2, -1))
        Yf = Uf * Kf[None, :, :, :]
        y = (lambda x, s, axes=(-2,-1): torch.fft.irfft2(x, s=s, dim=axes).to(torch.bfloat16))(Yf, (1, L2), axes=(-2, -1))[:, :, 0, :L]
        y = (lambda x, *d: x.permute(*d))(y, 0, 2, 1) + u * Dskip[None, None, :]
        return y

    x = A_q
    g = _sigmoid((x * gate_w).sum(-1, keepdims=True))
    a = _A_ref(x, A_k, A_v, A_shift_k, A_ssm_k, A_ssm_D)
    b = _B_ref(x, B_A_re, B_A_im, B_B_re, B_B_im, B_C_re, B_C_im, B_log_dt, B_Dskip)
    return g * a + (1 - g) * b
```

```python
import sys

KN = "gated_mix__ssm_conv_h3__ssm_conv_s4__prompt_kernel"

KA = dict(q=0, k=8, v=16, shift=24, ssmk=32, ssmD=40, u=48, Are=56, Aim=64, Bre=72, Bim=80,
          Cre=88, Cim=96, logdt=104, Dskip=112, gw=120, out=128, dbg=136, ws=144)

XKV_OFF = 0
XQ_OFF = 2 << 20
KB_OFF = 4 << 20
G_OFF = 6 << 20

KCOPY = 4160
KUNIT = 4 * KCOPY
KBASE = 0
XUNIT = 4608
XBASE = KBASE + 4 * KUNIT
YBASE = XBASE + 4 * XUNIT
GBASE = YBASE + 8 * 4 * 1024
FBASE = GBASE + 8192
CONV_LDS = FBASE + 64


class Asm:
    def __init__(self):
        self.l = []
        self.n = 0

    def __call__(self, s):
        self.l.append("    " + s)

    def label(self, s):
        self.l.append(s + ":")

    def c(self, s):
        self.l.append("    ; " + s)

    def text(self):
        return "\n".join(self.l) + "\n"


def kernel_wrap(name, body, vgpr, sgpr=102, accum=None):
    accum = accum or ((vgpr + 3) // 4 * 4)
    return f""".text
.globl {name}
.p2align 8
.type {name},@function
{name}:
{body}
.section .rodata,"a"
.p2align 6
.amdhsa_kernel {name}
  .amdhsa_next_free_vgpr {vgpr}
  .amdhsa_next_free_sgpr {sgpr}
  .amdhsa_accum_offset {accum}
  .amdhsa_group_segment_fixed_size 0
  .amdhsa_kernarg_size 152
  .amdhsa_user_sgpr_count 2
  .amdhsa_user_sgpr_kernarg_segment_ptr 1
  .amdhsa_system_sgpr_workgroup_id_x 1
.end_amdhsa_kernel
"""


def vr(a, n=1):
    return f"v{a}" if n == 1 else f"v[{a}:{a+n-1}]"


def sr(a, n=1):
    return f"s{a}" if n == 1 else f"s[{a}:{a+n-1}]"


def mfma_order(groups):
    order = []
    for g in groups:
        for i in range(0, max(g) + 1):
            for r in range(8):
                for t in g:
                    if t >= i:
                        order.append((t, i, r))
    return order


def gen_main_stream(a, groups, vA_addr, vB_addr, vY_addr, vF_addr, vOne, frag_base, nslots, acc_base,
                    lookahead=12, barrier_after_first_tile=True, max_ld_per_slot=3):
    order = mfma_order(groups)
    N = len(order)
    need = []
    for (t, i, r) in order:
        m = 8 * i + r
        p = 8 * (t - i) - r
        need.append((('A', m), ('B', p)))
    uses = {}
    for k, (fa, fb) in enumerate(need):
        uses.setdefault(fa, []).append(k)
        uses.setdefault(fb, []).append(k)

    def next_use(f, k):
        for x in uses[f]:
            if x >= k:
                return x
        return 1 << 30

    last_of_tile = {}
    first_of_tile = {}
    for k, (t, i, r) in enumerate(order):
        last_of_tile[t] = k
        first_of_tile.setdefault(t, k)

    slot_of = {}
    slot_frag = [None] * nslots
    ds_seq = 0
    load_seq = {}
    done_upto = 0
    pend_load = 0
    instr_since = {}
    pending_writes = []
    icount = [0]
    nloads = [0]
    first_tile_done = [False]

    def emit(s):
        a(s)
        icount[0] += 1

    def issue_load(f, k):
        nonlocal ds_seq
        free = [s for s in range(nslots) if slot_frag[s] is None]
        if free:
            s = free[0]
        else:
            best, bu = None, -1
            for s2 in range(nslots):
                nu = next_use(slot_frag[s2], k)
                if nu > bu:
                    best, bu = s2, nu
            if bu <= uses_next_f(f, k):
                return False
            s = best
            del slot_of[slot_frag[s]]
        slot_frag[s] = f
        slot_of[f] = s
        reg = frag_base + 4 * s
        if f[0] == 'A':
            off = 64 * f[1]
            emit(f"ds_read_b64 {vr(reg,2)}, {vr(vA_addr)} offset:{off}")
            emit(f"ds_read_b64 {vr(reg+2,2)}, {vr(vA_addr)} offset:{off+8}")
            ds_seq += 2
        else:
            off = 3584 - 64 * f[1]
            emit(f"ds_read_b128 {vr(reg,4)}, {vr(vB_addr)} offset:{off}")
            ds_seq += 1
        load_seq[f] = ds_seq - 1
        nloads[0] += 1
        return True

    def uses_next_f(f, k):
        return next_use(f, k)

    def request(upto, k, budget):
        nonlocal pend_load
        cnt = 0
        while pend_load <= min(upto, N - 1) and cnt < budget:
            ok = True
            for f in need[pend_load]:
                if f not in slot_of:
                    if cnt >= budget:
                        ok = False
                        break
                    if not issue_load(f, k):
                        ok = False
                        break
                    cnt += 1
            if not ok:
                break
            pend_load += 1

    for k in range(N):
        request(k + lookahead, k, max_ld_per_slot if k > 0 else 12)
        while pend_load <= k:
            request(k, k, 4)
        for pw in list(pending_writes):
            if icount[0] >= pw[1]:
                t = pw[0]
                emit(f"ds_write_b128 {vr(vY_addr)}, {vr(acc_base+4*t,4)} offset:{t*4096}")
                ds_seq += 1
                if not first_tile_done[0] and barrier_after_first_tile:
                    emit("s_waitcnt lgkmcnt(0)")
                    done_upto = ds_seq
                    emit("s_barrier")
                    first_tile_done[0] = True
                emit("s_mov_b64 exec, 1")
                emit(f"ds_add_u32 {vr(vF_addr)}, {vr(vOne)} offset:{4*t}")
                emit("s_mov_b64 exec, -1")
                ds_seq += 1
                pending_writes.remove(pw)
        fa, fb = need[k]
        lastseq = max(load_seq[fa], load_seq[fb])
        if lastseq >= done_upto:
            n_after = ds_seq - 1 - lastseq
            n_after = min(n_after, 15)
            emit(f"s_waitcnt lgkmcnt({n_after})")
            done_upto = ds_seq - n_after
        t, i, r = order[k]
        ra = frag_base + 4 * slot_of[fa]
        rb = frag_base + 4 * slot_of[fb]
        acc = vr(acc_base + 4 * t, 4)
        srcc = "0" if first_of_tile[t] == k else acc
        emit(f"v_mfma_f32_16x16x32_bf16 {acc}, {vr(ra,4)}, {vr(rb,4)}, {srcc}")
        if last_of_tile[t] == k:
            pending_writes.append((t, icount[0] + 9))
    for (t, at) in sorted(pending_writes, key=lambda x: x[1]):
        if icount[0] < at:
            n = at - icount[0]
            while n > 0:
                d = min(n, 16)
                a(f"s_nop {d-1}")
                icount[0] += d
                n -= d
        emit(f"ds_write_b128 {vr(vY_addr)}, {vr(acc_base+4*t,4)} offset:{t*4096}")
        emit("s_mov_b64 exec, 1")
        emit(f"ds_add_u32 {vr(vF_addr)}, {vr(vOne)} offset:{4*t}")
        emit("s_mov_b64 exec, -1")
    return nloads[0]


def stage_chunk_loads(a, vD, vOff, vOff2, srd):
    a(f"buffer_load_dwordx4 {vr(vD,4)}, {vr(vOff)}, {srd}, 0 offen")
    a(f"buffer_load_dwordx2 {vr(vD+4,2)}, {vr(vOff2)}, {srd}, 0 offen")


def stage_chunk_write(a, vD, vT, vLds):
    a(f"ds_write_b128 {vr(vLds)}, {vr(vD,4)}")
    for j in range(4):
        a(f"v_alignbit_b32 {vr(vT+j)}, {vr(vD+j+1)}, {vr(vD+j)}, 16")
    a(f"ds_write_b128 {vr(vLds)}, {vr(vT,4)} offset:{KCOPY}")
    for j in range(4):
        a(f"v_mov_b32 {vr(vT+4+j)}, {vr(vD+j+1)}")
    a(f"ds_write_b128 {vr(vLds)}, {vr(vT+4,4)} offset:{2*KCOPY}")
    for j in range(4):
        a(f"v_alignbit_b32 {vr(vT+8+j)}, {vr(vD+j+2)}, {vr(vD+j+1)}, 16")
    a(f"ds_write_b128 {vr(vLds)}, {vr(vT+8,4)} offset:{3*KCOPY}")


def round_pair(a, dst, src, tmp):
    a(f"v_cvt_pk_bf16_f32 {vr(tmp)}, {vr(src)}, {vr(src+1)}")
    a(f"v_lshlrev_b32 {vr(dst)}, 16, {vr(tmp)}")
    a(f"v_and_b32 {vr(dst+1)}, 0xffff0000, {vr(tmp)}")


STAMP_OFF = 16 << 20
def stamp(a, idx, on):
    if on:
        a(f"s_memrealtime s[{80+2*idx}:{81+2*idx}]")

def stamp_flush(a, n, on, wsreg="s[6:7]"):
    if not on:
        return
    a("s_waitcnt lgkmcnt(0)")
    a("s_lshl_b32 s58, s2, 3")
    a("s_add_u32 s58, s58, s14")
    a("s_lshl_b32 s58, s58, 6")
    a(f"s_add_u32 s58, s58, {STAMP_OFF}")
    a("v_mov_b32 v1, s58")
    a("s_mov_b64 exec, 1")
    for i in range(n):
        a(f"v_mov_b32 v2, s{80+2*i}")
        a(f"global_store_dword v1, v2, {wsreg} offset:{4*i}")
    a("s_mov_b64 exec, -1")

def gen_conv_kernel(name, groups=((0, 1, 2, 3), (4, 5, 6, 7)), mimic=True, st=False):
    a = Asm()
    stamp(a, 0, st)
    a("s_cmp_ge_u32 s2, 256")
    a("s_cbranch_scc1 L_conv_end")
    a(f"s_load_dwordx2 s[4:5], s[0:1], {KA['ssmk']}")
    a(f"s_load_dwordx2 s[6:7], s[0:1], {KA['ws']}")
    a(f"s_load_dwordx2 s[8:9], s[0:1], {KA['out']}")
    a(f"s_load_dwordx2 s[10:11], s[0:1], {KA['ssmD']}")
    a(f"s_load_dwordx2 s[12:13], s[0:1], {KA['Dskip']}")
    a("v_lshrrev_b32 v1, 6, v0")
    a("v_and_b32 v2, 63, v0")
    a("v_readfirstlane_b32 s14, v1")
    a("s_and_b32 s15, s2, 7")
    a("s_lshl_b32 s15, s15, 5")
    a("s_lshr_b32 s3, s2, 3")
    a("s_add_u32 s15, s15, s3")
    a("s_and_b32 s20, s14, 3")
    a("s_and_b32 s21, s20, 1")
    a("s_lshr_b32 s22, s20, 1")
    a("s_lshl_b32 s23, s15, 1")
    a("s_add_u32 s23, s23, s21")
    a("s_lshl_b32 s23, s23, 12")
    a("v_lshlrev_b32 v3, 4, v2")
    a("s_waitcnt lgkmcnt(0)")
    stamp(a, 1, st)
    a(f"s_add_u32 s26, s6, {KB_OFF}")
    a("s_addc_u32 s27, s7, 0")
    a("s_cmp_eq_u32 s22, 0")
    a("s_cselect_b32 s16, s4, s26")
    a("s_cselect_b32 s17, s5, s27")
    a(f"s_cselect_b32 s28, {XKV_OFF}, {XQ_OFF}")
    a("s_add_u32 s16, s16, s23")
    a("s_addc_u32 s17, s17, 0")
    a("s_mov_b32 s18, 4096")
    a("s_mov_b32 s19, 0x20000")
    a("s_add_u32 s28, s28, s23")
    a("s_add_u32 s24, s6, s28")
    a("s_addc_u32 s25, s7, 0")
    a("s_lshl_b32 s29, s15, 2")
    a("s_load_dword s30, s[10:11], s29")
    a("s_load_dword s31, s[12:13], s29")
    a(f"s_mul_i32 s32, s20, {KUNIT}")
    a(f"s_mul_i32 s33, s20, {XUNIT}")
    a(f"s_add_u32 s33, s33, {XBASE}")
    a("s_cmp_ge_u32 s14, 4")
    a("s_cbranch_scc1 L_helper")

    a("s_mov_b32 m0, s33")
    a("v_subrev_u32 v4, 32, v3")
    a("global_load_lds_dwordx4 v3, s[24:25]")
    a("global_load_lds_dwordx4 v3, s[24:25] offset:1024")
    a("global_load_lds_dwordx4 v3, s[24:25] offset:2048")
    a("global_load_lds_dwordx4 v3, s[24:25] offset:3072")
    a("v_add_u32 v5, 16, v4")
    a("v_add_u32 v6, 1024, v4")
    a("v_add_u32 v7, 1040, v4")
    stage_chunk_loads(a, 8, 4, 5, "s[16:19]")
    stage_chunk_loads(a, 16, 6, 7, "s[16:19]")
    for j in range(4):
        a(f"v_mov_b32 v{24+j}, 0")
    a("v_add_u32 v28, s33, v3")
    a("s_mov_b32 exec_hi, 0")
    a("ds_write_b128 v28, v[24:27] offset:4096")
    a("s_mov_b64 exec, -1")
    a("v_add_u32 v29, s32, v3")
    if KBASE:
        a(f"v_add_u32 v29, {KBASE}, v29")
    a("v_add_u32 v30, 1024, v29")
    a("v_and_b32 v31, 15, v2")
    a("v_lshrrev_b32 v32, 4, v2")
    a("v_add_u32 v33, 1, v31")
    a("v_and_b32 v34, 3, v33")
    a("v_lshrrev_b32 v33, 2, v33")
    a(f"v_mul_u32_u24 v34, {KCOPY}, v34")
    a("v_lshlrev_b32 v33, 3, v33")
    a("v_lshlrev_b32 v35, 4, v32")
    a("v_add3_u32 v34, v34, v33, v35")
    a("v_add_u32 v40, s32, v34")
    if KBASE:
        a(f"v_add_u32 v40, {KBASE}, v40")
    a("v_sub_u32 v33, 15, v31")
    a("v_lshlrev_b32 v33, 5, v33")
    a("v_add3_u32 v41, v33, v35, s33")
    a("v_lshlrev_b32 v33, 6, v31")
    a("s_lshl_b32 s36, s20, 10")
    a(f"s_add_u32 s36, s36, {YBASE}")
    a("v_add3_u32 v42, v33, v35, s36")
    a(f"v_mov_b32 v43, {FBASE}")
    a("v_mov_b32 v44, 1")
    a("s_waitcnt vmcnt(2)")
    stamp(a, 2, st)
    stage_chunk_write(a, 8, 48, 29)
    a("s_waitcnt vmcnt(0)")
    stage_chunk_write(a, 16, 60, 30)
    a("s_waitcnt lgkmcnt(0)")
    stamp(a, 3, st)
    nl = gen_main_stream(a, groups, 40, 41, 42, 43, 44, frag_base=80, nslots=44, acc_base=48)
    sys.stderr.write(f"main stream fragment loads: {nl}\n")
    stamp(a, 4, st)
    stamp_flush(a, 5, st)
    a("s_endpgm")

    a.label("L_helper")
    a("s_sub_u32 s37, s14, 4")
    a("v_add_u32 v4, 2016, v3")
    a("v_add_u32 v5, 16, v4")
    a("v_add_u32 v6, 1024, v4")
    a("v_add_u32 v7, 1040, v4")
    a("v_add_u32 v24, 2048, v4")
    a("v_add_u32 v25, 2064, v4")
    stage_chunk_loads(a, 8, 4, 5, "s[16:19]")
    stage_chunk_loads(a, 16, 6, 7, "s[16:19]")
    stage_chunk_loads(a, 26, 24, 25, "s[16:19]")
    a("s_lshl_b32 s38, s37, 11")
    a(f"s_add_u32 s39, s38, {GBASE}")
    a("s_mov_b32 m0, s39")
    a(f"s_add_u32 s40, s6, {G_OFF}")
    a("s_addc_u32 s41, s7, 0")
    a("s_add_u32 s40, s40, s38")
    a("s_addc_u32 s41, s41, 0")
    a("global_load_lds_dwordx4 v3, s[40:41]")
    a("global_load_lds_dwordx4 v3, s[40:41] offset:1024")
    a(f"v_lshlrev_b32 v32, 2, v2")
    a(f"v_add_u32 v32, {FBASE}, v32")
    a("v_mov_b32 v33, 0")
    a("s_mov_b64 exec, 0xffff")
    a("ds_write_b32 v32, v33")
    a("s_mov_b64 exec, -1")
    a("v_add_u32 v34, s32, v3")
    a(f"v_add_u32 v34, {KBASE + 2048}, v34")
    a("v_add_u32 v35, 1024, v34")
    a("v_add_u32 v36, 2048, v34")
    a("s_waitcnt vmcnt(6)")
    stage_chunk_write(a, 8, 48, 34)
    a("s_waitcnt vmcnt(4)")
    stage_chunk_write(a, 16, 60, 35)
    a("s_waitcnt vmcnt(2)")
    a("s_mov_b64 exec, 3")
    stage_chunk_write(a, 26, 72, 36)
    a("s_mov_b64 exec, -1")
    a("s_lshl_b32 s42, s37, 6")
    a("v_add_u32 v10, s42, v2")
    a("v_lshlrev_b32 v11, 2, v10")
    a(f"v_add_u32 v12, {YBASE}, v11")
    a(f"v_add_u32 v13, {GBASE}, v11")
    a("v_lshlrev_b32 v14, 1, v10")
    a(f"v_sub_u32 v14, {XBASE + 4094 - 3584}, v14")
    a("v_lshlrev_b32 v15, 10, v10")
    a("s_lshl_b32 s43, s15, 2")
    a("v_add_u32 v15, s43, v15")
    a(f"v_mov_b32 v16, {FBASE}")
    for j in range(20, 24):
        a(f"v_mov_b32 v{j}, 0")
    a("s_waitcnt lgkmcnt(0)")
    a("s_lshl_b32 s44, s30, 16")
    a("s_and_b32 s45, s30, 0xffff0000")
    a("s_lshl_b32 s46, s31, 16")
    a("s_and_b32 s47, s31, 0xffff0000")
    a("v_mov_b32 v24, s44")
    a("v_mov_b32 v25, s45")
    a("v_mov_b32 v26, s46")
    a("v_mov_b32 v27, s47")
    a("s_waitcnt vmcnt(0) lgkmcnt(0)")
    stamp(a, 2, st)
    a("s_barrier")
    stamp(a, 3, st)
    for t in range(8):
        a.label(f"L_poll{t}")
        a(f"ds_read_b32 v17, v16 offset:{4*t}")
        a("s_waitcnt lgkmcnt(0)")
        a("v_readfirstlane_b32 s48, v17")
        a("s_cmp_ge_u32 s48, 4")
        a(f"s_cbranch_scc1 L_go{t}")
        a("s_sleep 1")
        a(f"s_branch L_poll{t}")
        a.label(f"L_go{t}")
        yo = t * 4096
        a(f"ds_read_b32 v28, v12 offset:{yo}")
        a(f"ds_read_b32 v29, v12 offset:{yo+1024}")
        a(f"ds_read_b32 v30, v12 offset:{yo+2048}")
        a(f"ds_read_b32 v31, v12 offset:{yo+3072}")
        xo = (7 - t) * 512
        a(f"ds_read_u16_d16_hi v20, v14 offset:{xo}")
        a(f"ds_read_u16_d16_hi v21, v14 offset:{xo+XUNIT}")
        a(f"ds_read_u16_d16_hi v22, v14 offset:{xo+2*XUNIT}")
        a(f"ds_read_u16_d16_hi v23, v14 offset:{xo+3*XUNIT}")
        a(f"ds_read_b32 v32, v13 offset:{t*1024}")
        a(f"v_add_u32 v18, {t*256*1024}, v15")
        a("s_waitcnt lgkmcnt(0)")
        if mimic:
            round_pair(a, 28, 28, 40)
            a("v_pk_mul_f32 v[34:35], v[20:21], v[24:25]")
            round_pair(a, 30, 30, 41)
            a("v_pk_mul_f32 v[36:37], v[22:23], v[26:27]")
            round_pair(a, 34, 34, 40)
            round_pair(a, 36, 36, 41)
            a("v_pk_add_f32 v[28:29], v[28:29], v[34:35]")
            a("v_pk_add_f32 v[30:31], v[30:31], v[36:37]")
            a("v_sub_f32 v33, 1.0, v32")
            round_pair(a, 28, 28, 40)
            round_pair(a, 30, 30, 41)
            a("v_cvt_pk_bf16_f32 v42, v33, v33")
            a("v_pk_mul_f32 v[28:29], v[28:29], v[22:23]")
            a("v_and_b32 v33, 0xffff0000, v42")
            round_pair(a, 28, 28, 40)
            a("v_mul_f32 v30, v30, v33")
            a("v_mul_f32 v31, v31, v33")
            a("v_pk_mul_f32 v[28:29], v[28:29], v[32:33] op_sel:[0,0] op_sel_hi:[1,0]")
            round_pair(a, 30, 30, 41)
            round_pair(a, 28, 28, 40)
            a("v_pk_add_f32 v[28:29], v[28:29], v[30:31]")
            a("v_cvt_pk_bf16_f32 v19, v28, v29")
        else:
            a("v_pk_fma_f32 v[28:29], v[20:21], v[24:25], v[28:29]")
            a("v_pk_fma_f32 v[30:31], v[22:23], v[26:27], v[30:31]")
            a("v_pk_mul_f32 v[28:29], v[28:29], v[22:23]")
            a("v_pk_add_f32 v[28:29], v[28:29], v[30:31] neg_lo:[0,1] neg_hi:[0,1]")
            a("v_pk_fma_f32 v[28:29], v[28:29], v[32:33], v[30:31] op_sel:[0,0,0] op_sel_hi:[1,0,1]")
            a("v_cvt_pk_bf16_f32 v19, v28, v29")
        a("global_store_dword v18, v19, s[8:9]")
        if t in (3, 7):
            stamp(a, 4 if t == 3 else 5, st)
    if st:
        a("s_waitcnt vmcnt(0)")
    stamp(a, 6, st)
    stamp_flush(a, 7, st)
    a.label("L_conv_end")
    a("s_endpgm")
    return kernel_wrap(name, a.text(), vgpr=256)


HEADER = """; Kernarg layout: 16 inputs, d_out (128), d_debug (136), d_ws (144)
"""

if __name__ == "__main__":
    mode = sys.argv[1]
    if mode == "conv_only":
        src = HEADER + f"; @launch grid=(256,1,1) block=(512,1,1) lds={CONV_LDS}\n"
        src += '.amdgcn_target "amdgcn-amd-amdhsa--gfx950"\n'
        src += gen_conv_kernel(KN, st=(len(sys.argv) > 3))
        open(sys.argv[2], "w").write(src)
```

```python
from gen import *

TBASE = 0
TABROW = 544
TABCH = 64 * TABROW
TAB = 16384
KTAB = TAB + 2 * TABCH
PREP_LDS = KTAB + 2 * 1536

L2E_HI = 0x3FB8AA3B
L2E_LO = 0x32A5705F
LN2 = 0x3F317218


def fbits(x):
    import struct
    return "0x%08x" % struct.unpack("<I", struct.pack("<f", x))[0]


def zpow(a, dre, dim, a2, b2, e, t1, t2):
    a(f"v_mul_f32 {vr(t1)}, {fbits(float(e))}, {vr(a2)}")
    a(f"v_mul_f32 {vr(t2)}, {fbits(float(e))}, {vr(b2)}")
    a(f"v_exp_f32 {vr(t1)}, {vr(t1)}")
    a(f"v_fract_f32 {vr(t2)}, {vr(t2)}")
    a(f"v_cos_f32 {vr(dre)}, {vr(t2)}")
    a(f"v_sin_f32 {vr(dim)}, {vr(t2)}")
    a(f"v_mul_f32 {vr(dre)}, {vr(dre)}, {vr(t1)}")
    a(f"v_mul_f32 {vr(dim)}, {vr(dim)}, {vr(t1)}")


def cmul(a, d, x, y, t):
    a(f"v_mul_f32 {vr(t)}, {vr(x+1)}, {vr(y+1)}")
    a(f"v_mul_f32 {vr(t+1)}, {vr(x+1)}, {vr(y)}")
    a(f"v_fma_f32 {vr(d)}, {vr(x)}, {vr(y)}, -{vr(t)}")
    a(f"v_fma_f32 {vr(d+1)}, {vr(x)}, {vr(y+1)}, {vr(t+1)}")


def wr_u(a, addr, x, row, t):
    a(f"v_cvt_pk_f16_f32 {vr(t)}, {vr(x)}, -{vr(x+1)}")
    a(f"ds_write_b32 {vr(addr)}, {vr(t)} offset:{row*TABROW}")


def wr_v(a, addr, x, r, t):
    a(f"v_cvt_pk_f16_f32 {vr(t)}, {vr(x)}, {vr(x+1)}")
    a(f"ds_write_b32 {vr(addr)}, {vr(t)} offset:{(48+r)*TABROW}")


def dpp_reduce(a, op, v):
    for sh in (1, 2, 4, 8):
        a("s_nop 1")
        a(f"{op}_dpp {vr(v)}, {vr(v)}, {vr(v)} row_shr:{sh} row_mask:0xf bank_mask:0xf bound_ctrl:0")
    a("s_nop 1")
    a(f"{op}_dpp {vr(v)}, {vr(v)}, {vr(v)} row_bcast:15 row_mask:0xa bank_mask:0xf")
    a("s_nop 1")
    a(f"{op}_dpp {vr(v)}, {vr(v)}, {vr(v)} row_bcast:31 row_mask:0xc bank_mask:0xf")


def gen_prep_kernel(name, st=False):
    a = Asm()
    stamp(a, 0, st)
    a("s_cmp_ge_u32 s2, 256")
    a("s_cbranch_scc1 L_prep_end")
    a("s_load_dwordx8 s[4:11], s[0:1], 0")
    a("s_load_dwordx16 s[16:31], s[0:1], 56")
    a("s_load_dwordx2 s[32:33], s[0:1], 120")
    a("s_load_dwordx2 s[34:35], s[0:1], 144")
    a("v_lshrrev_b32 v1, 6, v0")
    a("v_and_b32 v2, 63, v0")
    a("v_readfirstlane_b32 s14, v1")
    a("s_and_b32 s12, s2, 7")
    a("s_lshr_b32 s13, s2, 3")
    a("s_lshl_b32 s48, s12, 7")
    a("s_lshl_b32 s49, s13, 16")
    a("s_add_u32 s50, s48, s49")
    a("v_lshrrev_b32 v3, 4, v0")
    a("v_and_b32 v30, 15, v0")
    a("v_lshlrev_b32 v31, 11, v3")
    a("v_lshlrev_b32 v58, 3, v30")
    a("v_add3_u32 v31, v31, v58, s50")
    a("v_add_u32 v58, 1024, v31")
    a("v_subrev_u32 v59, 1024, v31")
    a("v_subrev_u32 v60, 2048, v31")
    a("v_subrev_u32 v61, 3072, v31")
    a("s_lshl_b32 s51, s12, 5")
    a("s_add_u32 s51, s51, s13")
    a("s_and_b32 s52, s14, 1")
    a("s_lshl_b32 s53, s51, 1")
    a("s_add_u32 s53, s53, s52")
    a("s_bfe_u32 s54, s14, 0x10001")
    a("s_waitcnt lgkmcnt(0)")
    stamp(a, 1, st)
    for (srd, p) in ((36, 4), (40, 6), (44, 8)):
        a(f"s_mov_b32 s{srd}, s{p}")
        a(f"s_mov_b32 s{srd+1}, s{p+1}")
        a(f"s_mov_b32 s{srd+2}, {2<<20}")
        a(f"s_mov_b32 s{srd+3}, 0x20000")
    a("buffer_load_dwordx2 v[12:13], v61, s[40:43], 0 offen")
    a("buffer_load_dwordx2 v[14:15], v60, s[40:43], 0 offen")
    a("buffer_load_dwordx2 v[16:17], v59, s[40:43], 0 offen")
    a("buffer_load_dwordx2 v[18:19], v31, s[40:43], 0 offen")
    a("buffer_load_dwordx2 v[20:21], v58, s[40:43], 0 offen")
    a("buffer_load_dwordx2 v[4:5], v31, s[36:39], 0 offen")
    a("buffer_load_dwordx2 v[6:7], v58, s[36:39], 0 offen")
    a("buffer_load_dwordx2 v[8:9], v31, s[44:47], 0 offen")
    a("buffer_load_dwordx2 v[10:11], v58, s[44:47], 0 offen")
    a("v_lshlrev_b32 v62, 5, v30")
    a("s_lshl_b32 s55, s12, 9")
    a("v_add_u32 v62, s55, v62")
    a("global_load_dwordx4 v[22:25], v62, s[10:11]")
    a("global_load_dwordx4 v[26:29], v62, s[10:11] offset:16")
    for j in range(40, 50):
        a(f"v_mov_b32 v{j}, 0")
    a("s_lshl_b32 s56, s53, 8")
    a("s_lshl_b32 s57, s54, 7")
    a("v_lshlrev_b32 v63, 1, v2")
    a("v_add_u32 v64, s56, v63")
    a("v_add_u32 v63, s57, v64")
    a("v_xor_b32 v64, 128, v63")
    for j, p in enumerate((16, 18, 20, 22, 24, 26)):
        a(f"global_load_short_d16_hi v{40+j}, v63, s[{p}:{p+1}]")
    for j, p in enumerate((20, 22, 24, 26)):
        a(f"global_load_short_d16_hi v{46+j}, v64, s[{p}:{p+1}]")
    a("s_lshl_b32 s58, s51, 2")
    a("s_load_dword s59, s[28:29], s58")
    a("s_lshl_b32 s15, s2, 3")
    a("s_add_u32 s15, s15, s14")
    a("s_lshl_b32 s3, s15, 10")
    a("v_lshlrev_b32 v65, 4, v2")
    a("v_add_u32 v66, s3, v65")
    a("global_load_dwordx4 v[32:35], v66, s[4:5]")
    a("global_load_dwordx4 v[36:39], v65, s[32:33]")
    a("v_and_b32 v66, 255, v0")
    a("v_lshlrev_b32 v66, 3, v66")
    a("v_lshrrev_b32 v67, 8, v0")
    a(f"v_mul_u32_u24 v67, 1536, v67")
    a(f"v_add_u32 v67, {KTAB}, v67")
    a("v_mov_b32 v68, 127")
    for e in range(0, 8, 2):
        a(f"v_add_u32 v69, {e}, v66")
        a(f"v_add_u32 v70, {e+1}, v66")
        a("v_cvt_f32_u32 v71, v69")
        a("v_cvt_f32_u32 v72, v70")
        a("v_cvt_pk_bf16_f32 v71, v71, v72")
        a("v_and_b32 v72, 0xffff, v71")
        a("v_lshrrev_b32 v71, 16, v71")
        a("v_subrev_u32 v72, 17024, v72")
        a("v_subrev_u32 v71, 17024, v71")
        a("v_med3_i32 v72, v69, v68, v72")
        a("v_med3_i32 v71, v70, v68, v71")
        a(f"v_lshl_add_u32 v{50+e}, v72, 1, v67")
        a(f"v_lshl_add_u32 v{51+e}, v71, 1, v67")
    a("v_sub_u32 v66, 31, v3")
    a("v_lshrrev_b32 v67, 2, v66")
    a("v_and_b32 v68, 7, v30")
    a("v_xor_b32 v67, v67, v68")
    a("v_lshlrev_b32 v67, 4, v67")
    a("v_and_b32 v66, 3, v66")
    a("v_lshl_add_u32 v67, v66, 2, v67")
    a("v_lshl_add_u32 v31, v30, 9, v67")
    if TBASE:
        a(f"v_add_u32 v31, {TBASE}, v31")
    a("v_lshrrev_b32 v66, 3, v0")
    a("v_and_b32 v67, 7, v0")
    a("v_bfe_u32 v68, v0, 5, 3")
    a("v_xor_b32 v68, v67, v68")
    a("v_lshlrev_b32 v68, 4, v68")
    a("v_lshl_add_u32 v30, v66, 7, v68")
    if TBASE:
        a(f"v_add_u32 v30, {TBASE}, v30")
    a("v_lshlrev_b32 v66, 12, v66")
    a("v_lshl_add_u32 v3, v67, 4, v66")
    a("s_lshl_b32 s60, s12, 18")
    a("s_lshl_b32 s61, s13, 7")
    a("s_sub_u32 s60, s60, s61")
    a("s_add_u32 s60, s60, 3968")
    a("v_add_u32 v3, s60, v3")
    a("s_mov_b32 s62, 0x05040100")
    a("s_mov_b32 s63, 0x07060302")
    a("s_waitcnt vmcnt(12)")
    stamp(a, 2, st)
    KU, W, VU = 60, 80, 96
    for row in range(5):
        for e in range(2):
            src = 12 + 2 * row + e
            a(f"v_lshlrev_b32 v{KU+4*row+2*e}, 16, v{src}")
            a(f"v_and_b32 v{KU+4*row+2*e+1}, 0xffff0000, v{src}")
    for e in range(2):
        s0, s1, s2_, s3 = 22 + 4 * e, 23 + 4 * e, 24 + 4 * e, 25 + 4 * e
        a(f"v_lshlrev_b32 v{W+0+2*e}, 16, v{s0}")
        a(f"v_lshlrev_b32 v{W+0+2*e+1}, 16, v{s2_}")
        a(f"v_and_b32 v{W+4+2*e}, 0xffff0000, v{s0}")
        a(f"v_and_b32 v{W+4+2*e+1}, 0xffff0000, v{s2_}")
        a(f"v_lshlrev_b32 v{W+8+2*e}, 16, v{s1}")
        a(f"v_lshlrev_b32 v{W+8+2*e+1}, 16, v{s3}")
        a(f"v_and_b32 v{W+12+2*e}, 0xffff0000, v{s1}")
        a(f"v_and_b32 v{W+12+2*e+1}, 0xffff0000, v{s3}")
    for row in range(2):
        for e in range(2):
            src = 8 + 2 * row + e
            a(f"v_lshlrev_b32 v{VU+4*row+2*e}, 16, v{src}")
            a(f"v_and_b32 v{VU+4*row+2*e+1}, 0xffff0000, v{src}")
    chains = [(row, e) for row in range(2) for e in range(2)]
    def acc(ci): return 104 + 4 * ci
    def prod(ci): return 106 + 4 * ci
    for ci, (row, e) in enumerate(chains):
        a(f"v_pk_mul_f32 {vr(acc(ci),2)}, {vr(KU+4*(row+0)+2*e,2)}, {vr(W+12+2*e,2)}")
    for ci, (row, e) in enumerate(chains):
        round_pair(a, acc(ci), acc(ci), 120 + ci)
    for j in (2, 1, 0):
        for ci, (row, e) in enumerate(chains):
            a(f"v_pk_mul_f32 {vr(prod(ci),2)}, {vr(KU+4*(row+3-j)+2*e,2)}, {vr(W+4*j+2*e,2)}")
        for ci, (row, e) in enumerate(chains):
            round_pair(a, prod(ci), prod(ci), 120 + ci)
        for ci, (row, e) in enumerate(chains):
            a(f"v_pk_add_f32 {vr(acc(ci),2)}, {vr(acc(ci),2)}, {vr(prod(ci),2)}")
        for ci, (row, e) in enumerate(chains):
            round_pair(a, acc(ci), acc(ci), 120 + ci)
    for ci, (row, e) in enumerate(chains):
        a(f"v_pk_mul_f32 {vr(acc(ci),2)}, {vr(acc(ci),2)}, {vr(VU+4*row+2*e,2)}")
    for j in range(4):
        e, x = j >> 1, j & 1
        a(f"v_cvt_pk_bf16_f32 v{124+j}, v{acc(2+e)+x}, v{acc(0+e)+x}")
        a(f"v_perm_b32 v{128+j}, v{4+e}, v{6+e}, s{62+x}")
    for j in range(4):
        a(f"ds_write_b32 v31, v{124+j} offset:{j*128}")
        a(f"ds_write_b32 v31, v{128+j} offset:{8192 + j*128}")
    a("s_waitcnt lgkmcnt(0)")
    a("s_barrier")
    a("ds_read_b128 v[124:127], v30")
    a("ds_read_b128 v[128:131], v30 offset:8192")
    a(f"s_add_u32 s64, s34, {XKV_OFF}")
    a("s_addc_u32 s65, s35, 0")
    a(f"s_add_u32 s66, s34, {XQ_OFF}")
    a("s_addc_u32 s67, s35, 0")
    a("s_waitcnt lgkmcnt(1)")
    a("global_store_dwordx4 v3, v[124:127], s[64:65]")
    a("s_waitcnt lgkmcnt(0)")
    a("global_store_dwordx4 v3, v[128:131], s[66:67]")
    stamp(a, 3, st)
    a("s_waitcnt vmcnt(2)")
    for e in range(4):
        a(f"v_lshlrev_b32 v{60+2*e}, 16, v{32+e}")
        a(f"v_and_b32 v{61+2*e}, 0xffff0000, v{32+e}")
        a(f"v_lshlrev_b32 v{68+2*e}, 16, v{36+e}")
        a(f"v_and_b32 v{69+2*e}, 0xffff0000, v{36+e}")
    for e in range(4):
        a(f"v_pk_mul_f32 {vr(60+2*e,2)}, {vr(60+2*e,2)}, {vr(68+2*e,2)}")
    for e in range(4):
        round_pair(a, 60 + 2 * e, 60 + 2 * e, 76 + e)
    a("v_pk_add_f32 v[60:61], v[60:61], v[62:63]")
    a("v_pk_add_f32 v[64:65], v[64:65], v[66:67]")
    a("v_pk_add_f32 v[60:61], v[60:61], v[64:65]")
    a("v_add_f32 v60, v60, v61")
    dpp_reduce(a, "v_add_f32", 60)
    a("v_cvt_pk_bf16_f32 v60, v60, v60")
    a("v_and_b32 v60, 0xffff0000, v60")
    a(f"v_mul_f32 v60, {fbits(-1.4426950408889634)}, v60")
    a("v_exp_f32 v60, v60")
    a("s_nop 0")
    a("v_add_f32 v60, 1.0, v60")
    a("v_rcp_f32 v60, v60")
    a("s_nop 0")
    a("v_cvt_pk_bf16_f32 v60, v60, v60")
    a("v_and_b32 v60, 0xffff0000, v60")
    a("s_lshl_b32 s3, s15, 2")
    a(f"s_add_u32 s3, s3, {G_OFF}")
    a("v_mov_b32 v61, s3")
    a("s_mov_b32 exec_lo, 0")
    a("s_mov_b32 exec_hi, 0x80000000")
    a("global_store_dword v61, v60, s[34:35]")
    a("s_mov_b64 exec, -1")
    stamp(a, 4, st)
    a("s_waitcnt lgkmcnt(0)")
    a("s_lshl_b32 s68, s59, 16")
    a("s_and_b32 s69, s59, 0xffff0000")
    a("s_cmp_eq_u32 s52, 0")
    a("s_cselect_b32 s68, s68, s69")
    a("v_mov_b32 v60, s68")
    a(f"v_mul_f32 v61, 0x{L2E_HI:08x}, v60")
    a(f"s_mov_b32 s69, 0x{L2E_HI:08x}")
    a("v_fma_f32 v62, v60, s69, -v61")
    a(f"v_mov_b32 v63, 0x{L2E_LO:08x}")
    a("v_fmac_f32 v62, v60, v63")
    a("v_exp_f32 v61, v61")
    a(f"v_mul_f32 v62, 0x{LN2:08x}, v62")
    a("v_fma_f32 v61, v61, v62, v61")
    a("v_cvt_pk_bf16_f32 v61, v61, v61")
    a("v_and_b32 v61, 0xffff0000, v61")
    a("v_mul_f32 v62, v61, v40")
    a("v_mul_f32 v63, v61, v41")
    a(f"v_mul_f32 v62, 0x{L2E_HI:08x}, v62")
    a("v_mul_f32 v63, 0.15915494, v63")
    for (dst, b, cc) in ((64, 42, 44), (66, 46, 48)):
        a(f"v_mul_f32 v68, v61, v{b}")
        a(f"v_mul_f32 v69, v61, v{b+1}")
        cmul(a, dst, cc, 68, 70)
    a("v_max_f32 v68, |v64|, |v65|")
    a("v_max3_f32 v68, |v66|, |v67|, v68")
    dpp_reduce(a, "v_max_f32", 68)
    a("s_nop 0")
    a("v_readlane_b32 s70, v68, 63")
    a(f"s_max_u32 s70, s70, {fbits(1e-30)}")
    a("v_mov_b32 v68, s70")
    a("v_rcp_f32 v68, v68")
    a("s_nop 0")
    a("v_mul_f32 v64, v64, v68")
    a("v_mul_f32 v65, v65, v68")
    a(f"s_mul_i32 s71, s52, {TABCH}")
    a(f"s_add_u32 s71, s71, {TAB}")
    a("s_lshl_b32 s72, s54, 8")
    a("s_add_u32 s72, s72, s71")
    a("v_lshlrev_b32 v72, 2, v2")
    a("v_add_u32 v72, s72, v72")
    zpow(a, 74, 75, 62, 63, 128, 70, 71)
    grow = {0: 0, 1: 8, 2: 16, 3: 20, 4: 24, 5: 26, 6: 28, 7: 30}
    for h in range(8, 17):
        grow[h] = 32 + h - 8
    a("s_cmp_ge_u32 s14, 4")
    a("s_cbranch_scc1 L_typeY")
    zpow(a, 76, 77, 62, 63, 8, 70, 71)
    a("v_mov_b32 v78, 1.0")
    a("v_mov_b32 v79, 0")
    wr_v(a, 72, 78, 0, 73)
    wr_v(a, 72, 76, 1, 73)
    cur = 76
    for r in range(2, 16):
        nxt = 78 if cur != 78 else 80
        cmul(a, nxt, cur, 76, 70)
        wr_v(a, 72, nxt, r, 73)
        cur = nxt
    cur = 64
    wr_u(a, 72, cur, grow[0], 73)
    for h in range(1, 17):
        nxt = 78 if cur != 78 else 80
        cmul(a, nxt, cur, 74, 70)
        wr_u(a, 72, nxt, grow[h], 73)
        cur = nxt
    a("s_branch L_tabdone")
    a.label("L_typeY")
    Z = 82
    zpow(a, Z, Z + 1, 62, 63, 1, 70, 71)
    cmul(a, Z + 2, Z, Z, 70)
    cmul(a, Z + 4, Z + 2, Z, 70)
    cmul(a, Z + 6, Z + 2, Z + 2, 70)
    cmul(a, Z + 8, Z + 6, Z, 70)
    cmul(a, Z + 10, Z + 6, Z + 2, 70)
    cmul(a, Z + 12, Z + 6, Z + 4, 70)
    cur = 64
    for h in range(8):
        if h > 0:
            nxt = 78 if cur != 78 else 80
            cmul(a, nxt, cur, 74, 70)
            cur = nxt
        if h < 2:
            ds = [(d, grow[h] + d) for d in range(1, 8)]
        elif h < 4:
            ds = [(2, grow[h] + 1), (4, grow[h] + 2), (6, grow[h] + 3)]
        else:
            ds = [(4, grow[h] + 1)]
        for (d, row) in ds:
            cmul(a, 96, cur, Z + 2 * (d - 1), 70)
            wr_u(a, 72, 96, row, 73)
    a.label("L_tabdone")
    a("s_waitcnt lgkmcnt(0)")
    a("s_barrier")
    stamp(a, 5, st)
    a("s_cmp_ge_u32 s14, 6")
    a("s_cbranch_scc1 L_jobdone")
    a("s_lshr_b32 s73, s14, 1")
    a("v_and_b32 v60, 15, v2")
    a("v_lshrrev_b32 v61, 4, v2")
    a(f"v_mul_u32_u24 v62, {TABROW}, v60")
    a("v_lshl_add_u32 v62, v61, 4, v62")
    a("v_add_u32 v62, s71, v62")
    a(f"s_mul_i32 s74, s73, {16*TABROW}")
    a("v_add_u32 v63, s74, v62")
    for kk in range(8):
        a(f"ds_read_b128 {vr(80+4*kk,4)}, v63 offset:{64*kk}")
        a(f"ds_read_b128 {vr(112+4*kk,4)}, v62 offset:{48*TABROW + 64*kk}")
    for kk in range(8):
        a(f"s_waitcnt lgkmcnt({14-2*kk})")
        srcc = "0" if kk == 0 else "v[64:67]"
        a(f"v_mfma_f32_16x16x32_f16 v[64:67], {vr(80+4*kk,4)}, {vr(112+4*kk,4)}, {srcc}")
    a("s_mul_i32 s75, s52, 1536")
    a(f"s_add_u32 s75, s75, {KTAB}")
    a("s_nop 7")
    for r in range(4):
        a(f"v_mul_f32 v{64+r}, s70, v{64+r}")
    a("v_cvt_pk_bf16_f32 v68, v64, v65")
    a("v_cvt_pk_bf16_f32 v69, v66, v67")
    a("s_cmp_eq_u32 s73, 1")
    a("s_cbranch_scc1 L_job1")
    a("s_cmp_eq_u32 s73, 2")
    a("s_cbranch_scc1 L_job2")
    a("v_lshrrev_b32 v70, 1, v61")
    a("v_lshlrev_b32 v70, 8, v70")
    a("v_lshl_add_u32 v70, v60, 4, v70")
    a("v_and_b32 v71, 1, v61")
    a("v_lshl_add_u32 v70, v71, 3, v70")
    a("v_add_u32 v70, s75, v70")
    a("ds_write_b64 v70, v[68:69]")
    a("s_branch L_jobdone")
    a.label("L_job1")
    a("v_lshlrev_b32 v70, 7, v61")
    a("v_lshl_add_u32 v71, v60, 3, v70")
    a("v_lshl_add_u32 v72, v60, 2, v70")
    a("v_cmp_gt_u32 vcc, 2, v61")
    a("v_mov_b32 v73, 64")
    a("s_nop 1")
    a("v_cndmask_b32 v70, v72, v71, vcc")
    a("v_cndmask_b32 v73, v73, 4, vcc")
    a("v_add_u32 v70, s75, v70")
    a("v_add_u32 v73, v70, v73")
    a("ds_write_b32 v70, v68 offset:512")
    a("ds_write_b32 v73, v69 offset:512")
    a("s_branch L_jobdone")
    a.label("L_job2")
    a("v_lshlrev_b32 v70, 7, v61")
    a("v_lshl_add_u32 v70, v60, 1, v70")
    a("v_add_u32 v70, s75, v70")
    a("ds_write_b16 v70, v68 offset:1024")
    a("ds_write_b16_d16_hi v70, v68 offset:1056")
    a("ds_write_b16 v70, v69 offset:1088")
    a("ds_write_b16_d16_hi v70, v69 offset:1120")
    a.label("L_jobdone")
    a("s_waitcnt lgkmcnt(0)")
    a("s_barrier")
    stamp(a, 6, st)
    for e in range(0, 8, 2):
        a(f"ds_read_u16 v{60+e//2}, v{50+e}")
        a(f"ds_read_u16_d16_hi v{68+e//2}, v{51+e}")
    a("s_lshl_b32 s76, s51, 13")
    a(f"s_add_u32 s76, s76, {KB_OFF}")
    a("v_lshlrev_b32 v64, 4, v0")
    a("v_add_u32 v64, s76, v64")
    a("s_waitcnt lgkmcnt(0)")
    for e in range(4):
        a(f"v_and_b32 v{68+e}, 0xffff0000, v{68+e}")
        a(f"v_or_b32 v{60+e}, v{60+e}, v{68+e}")
    a("global_store_dwordx4 v64, v[60:63], s[34:35]")
    if st:
        a("s_waitcnt vmcnt(0)")
    stamp(a, 7, st)
    stamp_flush(a, 8, st, wsreg="s[34:35]")
    a.label("L_prep_end")
    a("s_endpgm")
    return kernel_wrap(name, a.text(), vgpr=144)


if __name__ == "__main__":
    out = sys.argv[1]
    st = len(sys.argv) > 2
    src = HEADER
    src += f"; @launch kernel=prep_kernel grid=(256,1,1) block=(512,1,1) lds={PREP_LDS}\n"
    src += f"; @launch kernel=conv_kernel grid=(256,1,1) block=(512,1,1) lds={CONV_LDS}\n"
    src += '.amdgcn_target "amdgcn-amd-amdhsa--gfx950"\n'
    src += gen_prep_kernel("prep_kernel", st=(st and sys.argv[2] == "st1"))
    src += gen_conv_kernel("conv_kernel", st=(st and sys.argv[2] == "st2"))
    open(out, "w").write(src)
```

```python
from gen import vr

def order_v2():
    o = []
    for u in range(4):
        for r in range(8):
            for i in range(0, 4 - u):
                o.append((u + i, i, r))
    for u in range(7, 0, -1):
        for r in range(8):
            for i in range(4):
                t = u + i
                if 4 <= t <= 7:
                    o.append((t, i, r))
    for u in range(4):
        for r in range(8):
            for i in range(4, 8):
                t = u + i
                if t <= 7:
                    o.append((t, i, r))
    assert len(o) == 288 and len(set(o)) == 288
    return o


class Stream:
    def __init__(self, a, order, vA, vB, vY, frag_base, nslots, acc_base, preload=(),
                 credit_per_slot=4.0, costA=4.8, costB=4.0, costW=8.0, horizon=48, urgent=10, safe_slots=9,
                 max_aux=2):
        self.a = a
        self.order = order
        self.vA, self.vB, self.vY = vA, vB, vY
        self.fb, self.ns, self.ab = frag_base, nslots, acc_base
        self.N = len(order)
        self.need = [(('A', 8 * i + r), ('B', 8 * (t - i) - r)) for (t, i, r) in order]
        self.uses = {}
        for k, fs in enumerate(self.need):
            for f in fs:
                self.uses.setdefault(f, []).append(k)
        self.slot_of = {}
        self.slot_frag = [None] * nslots
        self.preload = list(preload)
        for s, f in enumerate(self.preload):
            self.slot_of[f] = s
            self.slot_frag[s] = f
        self.p = dict(cps=credit_per_slot, cA=costA, cB=costB, cW=costW, hor=horizon, urg=urgent, safe=safe_slots,
                      maxaux=max_aux)

    def reg(self, f):
        return self.fb + 4 * self.slot_of[f]

    def emit_load(self, f):
        a = self.a
        reg = self.reg(f)
        if f[0] == 'A':
            off = 64 * f[1]
            a(f"ds_read_b64 {vr(reg,2)}, {vr(self.vA)} offset:{off}")
            a(f"ds_read_b64 {vr(reg+2,2)}, {vr(self.vA)} offset:{off+8}")
            return 2
        off = 3584 - 64 * f[1]
        a(f"ds_read_b128 {vr(reg,4)}, {vr(self.vB)} offset:{off}")
        return 1

    def emit_preload(self):
        for f in self.preload:
            self.emit_load(f)

    def next_use(self, f, k):
        for x in self.uses[f]:
            if x >= k:
                return x
        return 1 << 30

    def run(self):
        a, N, p = self.a, self.N, self.p
        last_of_tile, first_of_tile = {}, {}
        for k, (t, i, r) in enumerate(self.order):
            last_of_tile[t] = k
            first_of_tile.setdefault(t, k)
        ds_seq = 0
        seq_slot = []
        load_seq = {f: -1 for f in self.preload}
        done_upto = 0
        credit = 8.0
        pending_w = []
        icount = 0
        nloads = 0
        nwaits = 0
        for k in range(N):
            aux = 0
            credit = min(credit + p['cps'], 12.0) if k > 0 else 40.0
            maxaux = p['maxaux'] if k > 0 else 24
            for pw in list(pending_w):
                if icount >= pw[1] and aux < maxaux:
                    t = pw[0]
                    a(f"ds_write_b128 {vr(self.vY)}, {vr(self.ab+4*t,4)} offset:{t*4096}")
                    icount += 1; aux += 1
                    seq_slot.append(k); ds_seq += 1
                    credit -= p['cW']
                    pending_w.remove(pw)
            while True:
                cand = None
                for kk in range(k, min(N, k + p['hor'])):
                    for f in self.need[kk]:
                        if f not in self.slot_of:
                            cand = (f, kk)
                            break
                    if cand:
                        break
                if cand is None:
                    break
                f, kk = cand
                must = (kk == k)
                urgent = (kk - k) <= p['urg']
                cost = p['cA'] if f[0] == 'A' else p['cB']
                ninstr = 2 if f[0] == 'A' else 1
                if not must:
                    if aux + ninstr > maxaux + (1 if (urgent and ninstr == 2 and aux == 1) else 0):
                        break
                    if credit < cost and not (urgent and credit > -4):
                        break
                free = [s for s in range(self.ns) if self.slot_frag[s] is None]
                if free:
                    s = free[0]
                else:
                    best, bu = None, -1
                    for s2 in range(self.ns):
                        nu = self.next_use(self.slot_frag[s2], k)
                        if nu > bu:
                            best, bu = s2, nu
                    if bu < (1 << 30):
                        if not (urgent and bu > kk):
                            if must:
                                raise RuntimeError("no slot")
                            break
                    s = best
                    del self.slot_of[self.slot_frag[s]]
                self.slot_frag[s] = f
                self.slot_of[f] = s
                n = self.emit_load(f)
                icount += n; aux += n
                for _ in range(n):
                    seq_slot.append(k)
                ds_seq += n
                load_seq[f] = ds_seq - 1
                credit -= cost
                nloads += 1
            fa, fb = self.need[k]
            lastseq = max(load_seq[fa], load_seq[fb])
            if lastseq >= done_upto:
                n_need = ds_seq - 1 - lastseq
                n_opp = sum(1 for s in seq_slot if s > k - p['safe'])
                n = min(n_need, n_opp) if k > 0 else n_need
                n = min(n, 15)
                a(f"s_waitcnt lgkmcnt({n})")
                icount += 1
                nwaits += 1
                done_upto = ds_seq - n
            t, i, r = self.order[k]
            acc = vr(self.ab + 4 * t, 4)
            srcc = "0" if first_of_tile[t] == k else acc
            a(f"v_mfma_f32_16x16x32_bf16 {acc}, {vr(self.reg(fa),4)}, {vr(self.reg(fb),4)}, {srcc}")
            icount += 1
            if last_of_tile[t] == k:
                pending_w.append((t, icount + 8))
        for (t, at) in sorted(pending_w, key=lambda x: x[1]):
            n = at - icount
            while n > 0:
                d = min(n, 16)
                a(f"s_nop {d-1}")
                icount += d
                n -= d
            a(f"ds_write_b128 {vr(self.vY)}, {vr(self.ab+4*t,4)} offset:{t*4096}")
            icount += 1
        return dict(loads=nloads, waits=nwaits, instrs=icount)


def order_v3(steps2=((7, 5), (6, 2), (4,), (3, 1)), steps3=((0,), (1, 3), (2,))):
    o = []
    for u in range(4):
        for r in range(8):
            for i in range(0, 4 - u):
                o.append((u + i, i, r))
    for st in steps2:
        for r in range(8):
            for u in st:
                for i in range(4):
                    t = u + i
                    if 4 <= t <= 7:
                        o.append((t, i, r))
    for st in steps3:
        for r in range(8):
            for u in st:
                for i in range(4, 8):
                    t = u + i
                    if t <= 7:
                        o.append((t, i, r))
    assert len(o) == 288 and len(set(o)) == 288
    return o
```

```python
import sys
from gen import Asm, vr, sr, kernel_wrap, KA, KN, XKV_OFF, XQ_OFF, G_OFF, KCOPY, KUNIT, XUNIT, round_pair, stage_chunk_write
from gen_prep import fbits, zpow, cmul, dpp_reduce, L2E_HI, L2E_LO, LN2, TABROW, TABCH
import gen_prep
from sched import Stream, order_v3

KBASE = 0
R2 = 4 * KUNIT
XBASE = R2
YBASE = XBASE + 4 * XUNIT
TBASE = R2
TAB = R2
KTAB = TAB + 2 * TABCH
LDS_TOTAL = KTAB + 2 * 1536
STAMP_OFF = 16 << 20
SENT = "-1"


def gen_fused(name, st=False, mimic_kv=False, sc="sc1", prefetch_code=False):
    a = Asm()
    nst = [0]

    def stamp(i):
        if st:
            a(f"s_memrealtime s[{76+2*i}:{77+2*i}]")
            nst[0] = max(nst[0], i + 1)

    def wr_u(addr, x, row, t):
        a(f"v_cvt_pk_f16_f32 {vr(t)}, {vr(x)}, -{vr(x+1)}")
        a(f"ds_write_b32 {vr(addr)}, {vr(t)} offset:{row*TABROW}")

    def wr_v(addr, x, r, t):
        a(f"v_cvt_pk_f16_f32 {vr(t)}, {vr(x)}, {vr(x+1)}")
        a(f"ds_write_b32 {vr(addr)}, {vr(t)} offset:{(48+r)*TABROW}")

    def front_fix(vD, vT, vLds):
        for j in range(16):
            a(f"v_mov_b32 {vr(vT+j)}, 0")
        a(f"v_subrev_u32 {vr(vT+16)}, 32, {vr(vLds)}")
        a(f"v_lshlrev_b32 {vr(vT+7)}, 16, {vr(vD)}")
        a(f"v_mov_b32 {vr(vT+11)}, {vr(vD)}")
        a(f"v_lshlrev_b32 {vr(vT+14)}, 16, {vr(vD)}")
        a(f"v_alignbit_b32 {vr(vT+15)}, {vr(vD+1)}, {vr(vD)}, 16")
        for c in range(4):
            a(f"ds_write_b128 {vr(vT+16)}, {vr(vT,4)} offset:{c*KCOPY}")
        for c in range(4):
            a(f"ds_write_b128 {vr(vT+16)}, {vr(vT+4*c,4)} offset:{c*KCOPY+16}")

    stamp(0)
    a("s_cmp_ge_u32 s2, 256")
    a("s_cbranch_scc1 L_end")
    a("s_load_dwordx8 s[4:11], s[0:1], 0")
    a("s_load_dwordx4 s[40:43], s[0:1], 32")
    a("s_load_dwordx16 s[16:31], s[0:1], 56")
    a("s_load_dwordx2 s[32:33], s[0:1], 120")
    a("s_load_dwordx4 s[36:39], s[0:1], 128")
    a("s_load_dwordx2 s[34:35], s[0:1], 144")
    a("v_lshrrev_b32 v1, 6, v0")
    a("v_and_b32 v2, 63, v0")
    a("v_readfirstlane_b32 s14, v1")
    a("s_and_b32 s12, s2, 7")
    a("s_lshr_b32 s13, s2, 3")
    a("s_lshl_b32 s60, s12, 7")
    a("s_lshl_b32 s61, s13, 16")
    a("s_add_u32 s62, s60, s61")
    a("v_lshrrev_b32 v3, 4, v0")
    a("v_and_b32 v30, 15, v0")
    a("v_lshlrev_b32 v31, 11, v3")
    a("v_lshlrev_b32 v58, 3, v30")
    a("v_add3_u32 v31, v31, v58, s62")
    a("v_add_u32 v58, 1024, v31")
    a("v_subrev_u32 v59, 1024, v31")
    a("v_subrev_u32 v60, 2048, v31")
    a("v_subrev_u32 v61, 3072, v31")
    a("v_lshlrev_b32 v62, 5, v30")
    a("s_lshl_b32 s63, s12, 9")
    a("v_add_u32 v62, s63, v62")
    a("s_lshl_b32 s15, s12, 5")
    a("s_add_u32 s15, s15, s13")
    a("s_and_b32 s64, s14, 1")
    a("s_bfe_u32 s65, s14, 0x10001")
    a("s_waitcnt lgkmcnt(0)")
    stamp(1)
    for (srd, p) in ((44, 4), (48, 6), (52, 8)):
        a(f"s_mov_b32 s{srd}, s{p}")
        a(f"s_mov_b32 s{srd+1}, s{p+1}")
        a(f"s_mov_b32 s{srd+2}, {2<<20}")
        a(f"s_mov_b32 s{srd+3}, 0x20000")
    a("buffer_load_dwordx2 v[12:13], v61, s[48:51], 0 offen")
    a("buffer_load_dwordx2 v[14:15], v60, s[48:51], 0 offen")
    a("buffer_load_dwordx2 v[16:17], v59, s[48:51], 0 offen")
    a("buffer_load_dwordx2 v[18:19], v31, s[48:51], 0 offen")
    a("buffer_load_dwordx2 v[20:21], v58, s[48:51], 0 offen")
    a("buffer_load_dwordx2 v[8:9], v31, s[52:55], 0 offen")
    a("buffer_load_dwordx2 v[10:11], v58, s[52:55], 0 offen")
    a("global_load_dwordx4 v[22:25], v62, s[10:11]")
    a("global_load_dwordx4 v[26:29], v62, s[10:11] offset:16")
    a("buffer_load_dwordx2 v[4:5], v31, s[44:47], 0 offen")
    a("buffer_load_dwordx2 v[6:7], v58, s[44:47], 0 offen")
    a("s_lshl_b32 s66, s15, 2")
    a("s_load_dword s67, s[28:29], s66")
    a("s_load_dword s68, s[42:43], s66")
    a("s_load_dword s69, s[30:31], s66")
    a("v_and_b32 v66, 255, v0")
    a("v_lshlrev_b32 v66, 3, v66")
    a("v_lshrrev_b32 v67, 8, v0")
    a(f"v_mul_u32_u24 v67, 1536, v67")
    a(f"v_add_u32 v67, {KTAB}, v67")
    a("v_mov_b32 v68, 127")
    for e in range(0, 12, 2):
        a(f"v_add_u32 v69, {e}, v66")
        a(f"v_add_u32 v70, {e+1}, v66")
        a("v_cvt_f32_u32 v71, v69")
        a("v_cvt_f32_u32 v72, v70")
        a("v_cvt_pk_bf16_f32 v71, v71, v72")
        a("v_and_b32 v72, 0xffff, v71")
        a("v_lshrrev_b32 v71, 16, v71")
        a("v_subrev_u32 v72, 17024, v72")
        a("v_subrev_u32 v71, 17024, v71")
        a("v_med3_i32 v72, v69, v68, v72")
        a("v_med3_i32 v71, v70, v68, v71")
        a(f"v_lshl_add_u32 v{40+e}, v72, 1, v67")
        a(f"v_lshl_add_u32 v{41+e}, v71, 1, v67")
    a("v_sub_u32 v66, 31, v3")
    a("v_lshrrev_b32 v67, 2, v66")
    a("v_and_b32 v68, 7, v30")
    a("v_xor_b32 v67, v67, v68")
    a("v_lshlrev_b32 v67, 4, v67")
    a("v_and_b32 v66, 3, v66")
    a("v_lshl_add_u32 v67, v66, 2, v67")
    a("v_lshl_add_u32 v31, v30, 9, v67")
    a(f"v_add_u32 v31, {TBASE}, v31")
    a("v_lshrrev_b32 v66, 3, v0")
    a("v_and_b32 v67, 7, v0")
    a("v_bfe_u32 v68, v0, 5, 3")
    a("v_xor_b32 v68, v67, v68")
    a("v_lshlrev_b32 v68, 4, v68")
    a("v_lshl_add_u32 v30, v66, 7, v68")
    a(f"v_add_u32 v30, {TBASE}, v30")
    a("v_lshlrev_b32 v66, 12, v66")
    a("v_lshl_add_u32 v3, v67, 4, v66")
    a("s_lshl_b32 s60, s12, 18")
    a("s_lshl_b32 s61, s13, 7")
    a("s_sub_u32 s60, s60, s61")
    a("s_add_u32 s60, s60, 3968")
    a("v_add_u32 v3, s60, v3")
    a("s_mov_b32 s62, 0x05040100")
    a("s_mov_b32 s63, 0x07060302")
    a(f"s_add_u32 s70, s34, {XKV_OFF}")
    a("s_addc_u32 s71, s35, 0")
    a(f"s_add_u32 s72, s34, {XQ_OFF}")
    a("s_addc_u32 s73, s35, 0")
    KU, W, VU = 60, 80, 96
    a("s_waitcnt vmcnt(6)")
    for row in range(5):
        for e in range(2):
            src = 12 + 2 * row + e
            a(f"v_lshlrev_b32 v{KU+4*row+2*e}, 16, v{src}")
            a(f"v_and_b32 v{KU+4*row+2*e+1}, 0xffff0000, v{src}")
    a("s_waitcnt vmcnt(2)")
    stamp(2)
    for e in range(2):
        s0, s1, s2_, s3 = 22 + 4 * e, 23 + 4 * e, 24 + 4 * e, 25 + 4 * e
        a(f"v_lshlrev_b32 v{W+0+2*e}, 16, v{s0}")
        a(f"v_lshlrev_b32 v{W+0+2*e+1}, 16, v{s2_}")
        a(f"v_and_b32 v{W+4+2*e}, 0xffff0000, v{s0}")
        a(f"v_and_b32 v{W+4+2*e+1}, 0xffff0000, v{s2_}")
        a(f"v_lshlrev_b32 v{W+8+2*e}, 16, v{s1}")
        a(f"v_lshlrev_b32 v{W+8+2*e+1}, 16, v{s3}")
        a(f"v_and_b32 v{W+12+2*e}, 0xffff0000, v{s1}")
        a(f"v_and_b32 v{W+12+2*e+1}, 0xffff0000, v{s3}")
    for row in range(2):
        for e in range(2):
            src = 8 + 2 * row + e
            a(f"v_lshlrev_b32 v{VU+4*row+2*e}, 16, v{src}")
            a(f"v_and_b32 v{VU+4*row+2*e+1}, 0xffff0000, v{src}")
    chains = [(row, e) for row in range(2) for e in range(2)]
    def acc(ci): return 104 + 4 * ci
    def prod(ci): return 106 + 4 * ci
    for ci, (row, e) in enumerate(chains):
        a(f"v_pk_mul_f32 {vr(acc(ci),2)}, {vr(KU+4*(row+0)+2*e,2)}, {vr(W+12+2*e,2)}")
    if mimic_kv:
        for ci, (row, e) in enumerate(chains):
            round_pair(a, acc(ci), acc(ci), 120 + ci)
        for j in (2, 1, 0):
            for ci, (row, e) in enumerate(chains):
                a(f"v_pk_mul_f32 {vr(prod(ci),2)}, {vr(KU+4*(row+3-j)+2*e,2)}, {vr(W+4*j+2*e,2)}")
            for ci, (row, e) in enumerate(chains):
                round_pair(a, prod(ci), prod(ci), 120 + ci)
            for ci, (row, e) in enumerate(chains):
                a(f"v_pk_add_f32 {vr(acc(ci),2)}, {vr(acc(ci),2)}, {vr(prod(ci),2)}")
            for ci, (row, e) in enumerate(chains):
                round_pair(a, acc(ci), acc(ci), 120 + ci)
    else:
        for j in (2, 1, 0):
            for ci, (row, e) in enumerate(chains):
                a(f"v_pk_fma_f32 {vr(acc(ci),2)}, {vr(KU+4*(row+3-j)+2*e,2)}, {vr(W+4*j+2*e,2)}, {vr(acc(ci),2)}")
    for ci, (row, e) in enumerate(chains):
        a(f"v_pk_mul_f32 {vr(acc(ci),2)}, {vr(acc(ci),2)}, {vr(VU+4*row+2*e,2)}")
    for j in range(4):
        e, x = j >> 1, j & 1
        a(f"v_cvt_pk_bf16_f32 v{124+j}, v{acc(2+e)+x}, v{acc(0+e)+x}")
    for j in range(4):
        a(f"ds_write_b32 v31, v{124+j} offset:{j*128}")
    a("s_waitcnt vmcnt(0)")
    for j in range(4):
        e, x = j >> 1, j & 1
        a(f"v_perm_b32 v{128+j}, v{4+e}, v{6+e}, s{62+x}")
    for j in range(4):
        a(f"ds_write_b32 v31, v{128+j} offset:{8192 + j*128}")
    a("s_waitcnt lgkmcnt(0)")
    a("s_barrier")
    a("ds_read_b128 v[124:127], v30")
    a("ds_read_b128 v[128:131], v30 offset:8192")
    a("s_lshl_b32 s60, s2, 3")
    a("s_add_u32 s60, s60, s14")
    a("s_lshl_b32 s3, s60, 10")
    a("v_lshlrev_b32 v65, 4, v2")
    a("v_add_u32 v66, s3, v65")
    a("s_waitcnt lgkmcnt(1)")
    a(f"global_store_dwordx4 v3, v[124:127], s[70:71] {sc}")
    a("s_waitcnt lgkmcnt(0)")
    a(f"global_store_dwordx4 v3, v[128:131], s[72:73] {sc}")
    stamp(3)
    a("global_load_dwordx4 v[32:35], v66, s[4:5]")
    a("global_load_dwordx4 v[36:39], v65, s[32:33]")
    a("s_lshl_b32 s61, s15, 13")
    a("s_add_u32 s56, s40, s61")
    a("s_addc_u32 s57, s41, 0")
    a("s_mov_b32 s58, 8192")
    a("s_mov_b32 s59, 0x20000")
    a("v_lshlrev_b32 v67, 4, v0")
    a("buffer_load_dwordx4 v[4:7], v67, s[56:59], 0 offen")
    a("buffer_load_dwordx2 v[8:9], v67, s[56:59], 0 offen offset:16")
    for j in range(10, 20):
        a(f"v_mov_b32 v{j}, 0")
    a("s_lshl_b32 s61, s15, 1")
    a("s_add_u32 s61, s61, s64")
    a("s_lshl_b32 s61, s61, 8")
    a("s_lshl_b32 s3, s65, 7")
    a("v_lshlrev_b32 v68, 1, v2")
    a("v_add_u32 v69, s61, v68")
    a("v_add_u32 v68, s3, v69")
    a("v_xor_b32 v69, 128, v68")
    for j, p in enumerate((16, 18, 20, 22, 24, 26)):
        a(f"global_load_short_d16_hi v{10+j}, v68, s[{p}:{p+1}]")
    for j, p in enumerate((20, 22, 24, 26)):
        a(f"global_load_short_d16_hi v{16+j}, v69, s[{p}:{p+1}]")
    a("v_lshrrev_b32 v70, 8, v0")
    a(f"v_mul_u32_u24 v70, {KUNIT}, v70")
    a("v_and_b32 v71, 255, v0")
    a("v_lshl_add_u32 v70, v71, 4, v70")
    a(f"v_add_u32 v52, {KBASE+32}, v70")
    a("s_waitcnt vmcnt(14)")
    a("s_barrier")
    stamp(4)
    a("s_cmp_lg_u32 s14, 0")
    a("s_cbranch_scc1 L_noflag1")
    a("s_lshl_b32 s3, s12, 5")
    a("s_add_u32 s3, s3, s13")
    a("v_mov_b32 v72, s3")
    a("v_mov_b32 v73, 1")
    a("s_mov_b64 exec, 1")
    a(f"global_store_byte v72, v73, s[38:39] {sc}")
    a("s_mov_b64 exec, -1")
    a.label("L_noflag1")
    a("s_waitcnt vmcnt(12)")
    for e in range(4):
        a(f"v_lshlrev_b32 v{60+2*e}, 16, v{32+e}")
        a(f"v_and_b32 v{61+2*e}, 0xffff0000, v{32+e}")
        a(f"v_lshlrev_b32 v{68+2*e}, 16, v{36+e}")
        a(f"v_and_b32 v{69+2*e}, 0xffff0000, v{36+e}")
    for e in range(4):
        a(f"v_pk_mul_f32 {vr(60+2*e,2)}, {vr(60+2*e,2)}, {vr(68+2*e,2)}")
    for e in range(4):
        round_pair(a, 60 + 2 * e, 60 + 2 * e, 76 + e)
    a("v_pk_add_f32 v[60:61], v[60:61], v[62:63]")
    a("v_pk_add_f32 v[64:65], v[64:65], v[66:67]")
    a("v_pk_add_f32 v[60:61], v[60:61], v[64:65]")
    a("v_add_f32 v60, v60, v61")
    dpp_reduce(a, "v_add_f32", 60)
    a("v_cvt_pk_bf16_f32 v60, v60, v60")
    a("v_and_b32 v60, 0xffff0000, v60")
    a(f"v_mul_f32 v60, {fbits(-1.4426950408889634)}, v60")
    a("v_exp_f32 v60, v60")
    a("s_nop 0")
    a("v_add_f32 v60, 1.0, v60")
    a("v_rcp_f32 v60, v60")
    a("s_nop 0")
    a("v_cvt_pk_bf16_f32 v60, v60, v60")
    a("v_and_b32 v60, 0xffff0000, v60")
    a("s_lshl_b32 s3, s60, 2")
    a(f"s_add_u32 s3, s3, {G_OFF}")
    a("v_mov_b32 v61, s3")
    a("s_mov_b32 exec_lo, 0")
    a("s_mov_b32 exec_hi, 0x80000000")
    a(f"global_store_dword v61, v60, s[34:35] {sc}")
    a("s_mov_b64 exec, -1")
    a("s_waitcnt vmcnt(10)")
    stage_chunk_write(a, 4, 60, 52)
    a("s_and_b32 s3, s14, 3")
    a("s_cmp_lg_u32 s3, 0")
    a("s_cbranch_scc1 L_nofront1")
    a("s_mov_b64 exec, 1")
    front_fix(4, 72, 52)
    a("s_mov_b64 exec, -1")
    a.label("L_nofront1")
    stamp(5)
    a("s_waitcnt vmcnt(1) lgkmcnt(0)")
    a("s_lshl_b32 s3, s67, 16")
    a("s_and_b32 s61, s67, 0xffff0000")
    a("s_cmp_eq_u32 s64, 0")
    a("s_cselect_b32 s3, s3, s61")
    a("v_mov_b32 v60, s3")
    a(f"v_mul_f32 v61, 0x{L2E_HI:08x}, v60")
    a(f"s_mov_b32 s61, 0x{L2E_HI:08x}")
    a("v_fma_f32 v62, v60, s61, -v61")
    a(f"v_mov_b32 v63, 0x{L2E_LO:08x}")
    a("v_fmac_f32 v62, v60, v63")
    a("v_exp_f32 v61, v61")
    a(f"v_mul_f32 v62, 0x{LN2:08x}, v62")
    a("v_fma_f32 v61, v61, v62, v61")
    a("v_cvt_pk_bf16_f32 v61, v61, v61")
    a("v_and_b32 v61, 0xffff0000, v61")
    a("v_mul_f32 v62, v61, v10")
    a("v_mul_f32 v63, v61, v11")
    a(f"v_mul_f32 v62, 0x{L2E_HI:08x}, v62")
    a("v_mul_f32 v63, 0.15915494, v63")
    for (dst, b, cc) in ((64, 12, 14), (66, 16, 18)):
        a(f"v_mul_f32 v68, v61, v{b}")
        a(f"v_mul_f32 v69, v61, v{b+1}")
        cmul(a, dst, cc, 68, 70)
    a("v_max_f32 v68, |v64|, |v65|")
    a("v_max3_f32 v68, |v66|, |v67|, v68")
    dpp_reduce(a, "v_max_f32", 68)
    a("s_nop 0")
    a("v_readlane_b32 s74, v68, 63")
    a(f"s_max_u32 s74, s74, {fbits(1e-30)}")
    a("v_mov_b32 v68, s74")
    a("v_rcp_f32 v68, v68")
    a("s_nop 0")
    a("v_mul_f32 v64, v64, v68")
    a("v_mul_f32 v65, v65, v68")
    a(f"s_mul_i32 s75, s64, {TABCH}")
    a(f"s_add_u32 s75, s75, {TAB}")
    a("s_lshl_b32 s3, s65, 8")
    a("s_add_u32 s3, s3, s75")
    a("v_lshlrev_b32 v72, 2, v2")
    a("v_add_u32 v72, s3, v72")
    zpow(a, 74, 75, 62, 63, 128, 70, 71)
    grow = {0: 0, 1: 8, 2: 16, 3: 20, 4: 24, 5: 26, 6: 28, 7: 30}
    for h in range(8, 17):
        grow[h] = 32 + h - 8
    a("s_cmp_ge_u32 s14, 4")
    a("s_cbranch_scc1 L_typeY")
    zpow(a, 76, 77, 62, 63, 8, 70, 71)
    a("v_mov_b32 v78, 1.0")
    a("v_mov_b32 v79, 0")
    wr_v(72, 78, 0, 73)
    wr_v(72, 76, 1, 73)
    cur = 76
    for r in range(2, 16):
        nxt = 78 if cur != 78 else 80
        cmul(a, nxt, cur, 76, 70)
        wr_v(72, nxt, r, 73)
        cur = nxt
    cur = 64
    wr_u(72, cur, grow[0], 73)
    for h in range(1, 17):
        nxt = 78 if cur != 78 else 80
        cmul(a, nxt, cur, 74, 70)
        wr_u(72, nxt, grow[h], 73)
        cur = nxt
    a("s_branch L_tabdone")
    a.label("L_typeY")
    Z = 82
    zpow(a, Z, Z + 1, 62, 63, 1, 70, 71)
    cmul(a, Z + 2, Z, Z, 70)
    cmul(a, Z + 4, Z + 2, Z, 70)
    cmul(a, Z + 6, Z + 2, Z + 2, 70)
    cmul(a, Z + 8, Z + 6, Z, 70)
    cmul(a, Z + 10, Z + 6, Z + 2, 70)
    cmul(a, Z + 12, Z + 6, Z + 4, 70)
    cur = 64
    for h in range(8):
        if h > 0:
            nxt = 78 if cur != 78 else 80
            cmul(a, nxt, cur, 74, 70)
            cur = nxt
        if h < 2:
            ds = [(d, grow[h] + d) for d in range(1, 8)]
        elif h < 4:
            ds = [(2, grow[h] + 1), (4, grow[h] + 2), (6, grow[h] + 3)]
        else:
            ds = [(4, grow[h] + 1)]
        for (d, row) in ds:
            cmul(a, 96, cur, Z + 2 * (d - 1), 70)
            wr_u(72, 96, row, 73)
    a.label("L_tabdone")
    a("s_waitcnt vmcnt(0) lgkmcnt(0)")
    a("s_barrier")
    stamp(6)
    a("s_cmp_lg_u32 s14, 7")
    a("s_cbranch_scc1 L_noflag3")
    a("s_lshl_b32 s3, s12, 5")
    a("s_add_u32 s3, s3, s13")
    a("v_mov_b32 v72, s3")
    a("v_mov_b32 v73, 3")
    a("s_mov_b64 exec, 1")
    a(f"global_store_byte v72, v73, s[38:39] {sc}")
    a("s_mov_b64 exec, -1")
    a.label("L_noflag3")
    a("s_cmp_ge_u32 s14, 6")
    a("s_cbranch_scc1 L_jobdone")
    a("s_lshr_b32 s3, s14, 1")
    a("v_and_b32 v60, 15, v2")
    a("v_lshrrev_b32 v61, 4, v2")
    a(f"v_mul_u32_u24 v62, {TABROW}, v60")
    a("v_lshl_add_u32 v62, v61, 4, v62")
    a("v_add_u32 v62, s75, v62")
    a(f"s_mul_i32 s61, s3, {16*TABROW}")
    a("v_add_u32 v63, s61, v62")
    for kk in range(8):
        a(f"ds_read_b128 {vr(80+4*kk,4)}, v63 offset:{64*kk}")
        a(f"ds_read_b128 {vr(112+4*kk,4)}, v62 offset:{48*TABROW + 64*kk}")
    for kk in range(8):
        a(f"s_waitcnt lgkmcnt({14-2*kk})")
        srcc = "0" if kk == 0 else "v[64:67]"
        a(f"v_mfma_f32_16x16x32_f16 v[64:67], {vr(80+4*kk,4)}, {vr(112+4*kk,4)}, {srcc}")
    a("s_mul_i32 s61, s64, 1536")
    a(f"s_add_u32 s61, s61, {KTAB}")
    a("s_nop 7")
    for r in range(4):
        a(f"v_mul_f32 v{64+r}, s74, v{64+r}")
    a("v_cvt_pk_bf16_f32 v68, v64, v65")
    a("v_cvt_pk_bf16_f32 v69, v66, v67")
    a("s_cmp_eq_u32 s3, 1")
    a("s_cbranch_scc1 L_job1")
    a("s_cmp_eq_u32 s3, 2")
    a("s_cbranch_scc1 L_job2")
    a("v_lshrrev_b32 v70, 1, v61")
    a("v_lshlrev_b32 v70, 8, v70")
    a("v_lshl_add_u32 v70, v60, 4, v70")
    a("v_and_b32 v71, 1, v61")
    a("v_lshl_add_u32 v70, v71, 3, v70")
    a("v_add_u32 v70, s61, v70")
    a("ds_write_b64 v70, v[68:69]")
    a("s_branch L_jobdone")
    a.label("L_job1")
    a("v_lshlrev_b32 v70, 7, v61")
    a("v_lshl_add_u32 v71, v60, 3, v70")
    a("v_lshl_add_u32 v72, v60, 2, v70")
    a("v_cmp_gt_u32 vcc, 2, v61")
    a("v_mov_b32 v73, 64")
    a("s_nop 1")
    a("v_cndmask_b32 v70, v72, v71, vcc")
    a("v_cndmask_b32 v73, v73, 4, vcc")
    a("v_add_u32 v70, s61, v70")
    a("v_add_u32 v73, v70, v73")
    a("ds_write_b32 v70, v68 offset:512")
    a("ds_write_b32 v73, v69 offset:512")
    a("s_branch L_jobdone")
    a.label("L_job2")
    a("v_lshlrev_b32 v70, 7, v61")
    a("v_lshl_add_u32 v70, v60, 1, v70")
    a("v_add_u32 v70, s61, v70")
    a("ds_write_b16 v70, v68 offset:1024")
    a("ds_write_b16_d16_hi v70, v68 offset:1056")
    a("ds_write_b16 v70, v69 offset:1088")
    a("ds_write_b16_d16_hi v70, v69 offset:1120")
    a.label("L_jobdone")
    a("s_waitcnt lgkmcnt(0)")
    a("s_barrier")
    stamp(7)
    for e in range(0, 12, 2):
        a(f"ds_read_u16 v{60+e//2}, v{40+e}")
        a(f"ds_read_u16_d16_hi v{68+e//2}, v{41+e}")
    a(f"v_add_u32 v52, {2*KUNIT}, v52")
    a("s_and_b32 s20, s14, 3")
    a(f"s_mul_i32 s21, s20, {XUNIT}")
    a(f"s_add_u32 s21, s21, {XBASE}")
    a("v_lshlrev_b32 v53, 4, v2")
    a("s_waitcnt lgkmcnt(0)")
    for e in range(6):
        a(f"v_and_b32 v{68+e}, 0xffff0000, v{68+e}")
        a(f"v_or_b32 v{60+e}, v{60+e}, v{68+e}")
    stage_chunk_write(a, 60, 80, 52)
    a("s_and_b32 s3, s14, 3")
    a("s_cmp_lg_u32 s3, 0")
    a("s_cbranch_scc1 L_nofront2")
    a("s_mov_b64 exec, 1")
    front_fix(60, 92, 52)
    a("s_mov_b64 exec, -1")
    a.label("L_nofront2")
    a("s_and_b32 s3, s20, 1")
    a("s_lshl_b32 s61, s15, 1")
    a("s_add_u32 s61, s61, s3")
    a("s_lshl_b32 s61, s61, 12")
    a("s_lshr_b32 s3, s20, 1")
    a("s_cmp_eq_u32 s3, 0")
    a(f"s_cselect_b32 s3, {XKV_OFF}, {XQ_OFF}")
    a("s_add_u32 s61, s61, s3")
    a("s_lshr_b32 s3, s14, 2")
    a("s_lshl_b32 s3, s3, 11")
    a("s_add_u32 s61, s61, s3")
    a("s_add_u32 s22, s34, s61")
    a("s_addc_u32 s23, s35, 0")
    a("s_add_u32 s24, s21, s3")
    a("v_add_u32 v54, s24, v53")
    a("s_cmp_ge_u32 s14, 4")
    a("s_cbranch_scc1 L_helper_pre")
    for j in range(4):
        a(f"v_mov_b32 v{72+j}, 0")
    a("v_add_u32 v67, s21, v53")
    a("s_mov_b32 exec_hi, 0")
    a("ds_write_b128 v67, v[72:75] offset:4096")
    a("s_mov_b64 exec, -1")
    a(f"s_mul_i32 s25, s20, {KUNIT}")
    a("v_and_b32 v31, 15, v2")
    a("v_lshrrev_b32 v32, 4, v2")
    a("v_add_u32 v33, 1, v31")
    a("v_and_b32 v34, 3, v33")
    a("v_lshrrev_b32 v33, 2, v33")
    a(f"v_mul_u32_u24 v34, {KCOPY}, v34")
    a("v_lshlrev_b32 v33, 3, v33")
    a("v_lshlrev_b32 v35, 4, v32")
    a("v_add3_u32 v34, v34, v33, v35")
    a("v_add_u32 v4, s25, v34")
    a("v_sub_u32 v33, 15, v31")
    a("v_lshlrev_b32 v33, 5, v33")
    a("v_add3_u32 v5, v33, v35, s21")
    a("v_lshlrev_b32 v33, 6, v31")
    a("s_lshl_b32 s3, s20, 10")
    a(f"s_add_u32 s3, s3, {YBASE}")
    a("v_add3_u32 v6, v33, v35, s3")
    a("v_mov_b32 v7, v53")
    a("v_mov_b32 v1, v54")
    a("s_waitcnt lgkmcnt(0)")
    a("s_barrier")
    stamp(8)
    strm = Stream(a, order_v3(steps3=((0,), (1,), (2,), (3,))), 4, 5, 6, frag_base=40, nslots=54, acc_base=8,
                  preload=[('A', m) for m in range(32)], credit_per_slot=3.5, horizon=80, safe_slots=12)
    strm.emit_preload()
    a("s_barrier")
    stamp(9)
    a(f"global_load_dwordx4 v[8:11], v7, s[22:23] {sc}")
    a(f"global_load_dwordx4 v[12:15], v7, s[22:23] offset:1024 {sc}")
    a("s_waitcnt vmcnt(1)")
    a("ds_write_b128 v1, v[8:11]")
    a("s_waitcnt vmcnt(0)")
    a("ds_write_b128 v1, v[12:15] offset:1024")
    a("s_waitcnt lgkmcnt(0)")
    a("s_barrier")
    stamp(10)
    info = strm.run()
    sys.stderr.write(f"stream: {info}\n")
    stamp(11)
    a("s_branch L_fin")

    a.label("L_helper_pre")
    a("s_sub_u32 s26, s14, 4")
    for j in range(4):
        a(f"v_mov_b32 v{72+j}, -1")
    a("s_lshl_b32 s3, s26, 13")
    a(f"s_add_u32 s3, s3, {YBASE}")
    a("v_add_u32 v67, s3, v53")
    for j in range(8):
        a(f"ds_write_b128 v67, v[72:75] offset:{j*1024}")
    a("v_mov_b32 v7, v53")
    a("v_mov_b32 v1, v54")
    a("s_lshl_b32 s3, s26, 6")
    a("v_add_u32 v10, s3, v2")
    a("v_lshlrev_b32 v11, 2, v10")
    a(f"v_add_u32 v12, {YBASE}, v11")
    a(f"v_add_u32 v13, {G_OFF}, v11")
    a("v_lshlrev_b32 v14, 1, v10")
    a(f"v_sub_u32 v14, {XBASE + 4094 - 3584}, v14")
    a("v_lshlrev_b32 v15, 10, v10")
    a("s_lshl_b32 s3, s15, 2")
    a("v_add_u32 v15, s3, v15")
    for j in range(20, 24):
        a(f"v_mov_b32 v{j}, 0")
    a("s_lshl_b32 s3, s68, 16")
    a("v_mov_b32 v24, s3")
    a("s_and_b32 s3, s68, 0xffff0000")
    a("v_mov_b32 v25, s3")
    a("s_lshl_b32 s3, s69, 16")
    a("v_mov_b32 v26, s3")
    a("s_and_b32 s3, s69, 0xffff0000")
    a("v_mov_b32 v27, s3")
    a("s_waitcnt lgkmcnt(0)")
    a("s_barrier")
    stamp(8)
    a("s_cmp_lg_u32 s14, 4")
    a("s_cbranch_scc1 L_polled")
    a("s_lshl_b32 s3, s12, 5")
    a("v_lshlrev_b32 v16, 2, v2")
    a("v_add_u32 v16, s3, v16")
    a("s_mov_b32 s27, 0x01010101")
    a("s_mov_b32 s28, 0")
    a("s_mov_b64 exec, 0xff")
    a.label("L_poll1")
    a(f"global_load_dword v17, v16, s[38:39] {sc}")
    a("s_add_u32 s28, s28, 1")
    a("s_waitcnt vmcnt(0)")
    a("v_and_b32 v17, s27, v17")
    a("v_cmp_ne_u32 vcc, s27, v17")
    a("s_cmp_gt_u32 s28, 0x100000")
    a("s_cbranch_scc1 L_poll1_done")
    a("s_cbranch_vccnz L_poll1")
    a.label("L_poll1_done")
    a("s_mov_b64 exec, -1")
    a.label("L_polled")
    a("s_barrier")
    stamp(9)
    a(f"global_load_dwordx4 v[40:43], v7, s[22:23] {sc}")
    a(f"global_load_dwordx4 v[44:47], v7, s[22:23] offset:1024 {sc}")
    a("s_waitcnt vmcnt(1)")
    a("ds_write_b128 v1, v[40:43]")
    a("s_waitcnt vmcnt(0)")
    a("ds_write_b128 v1, v[44:47] offset:1024")
    a("s_waitcnt lgkmcnt(0)")
    a("s_barrier")
    stamp(10)
    a("v_lshlrev_b32 v16, 2, v2")
    a("s_mov_b32 s27, 0x03030303")
    a("s_mov_b32 s28, 0")
    a.label("L_poll2")
    a(f"global_load_dword v17, v16, s[38:39] {sc}")
    a("s_add_u32 s28, s28, 1")
    a("s_waitcnt vmcnt(0)")
    a("v_cmp_ne_u32 vcc, s27, v17")
    a("s_cmp_gt_u32 s28, 0x100000")
    a("s_cbranch_scc1 L_poll2_done")
    a("s_cbranch_vccnz L_poll2")
    a.label("L_poll2_done")
    for t in range(8):
        a(f"v_add_u32 v16, {t*1024}, v13")
        a(f"global_load_dword v{48+t}, v16, s[34:35] {sc}")
    for t in range(8):
        a("s_mov_b32 s28, 0")
        a.label(f"L_ypoll{t}")
        yo = t * 4096
        a(f"ds_read_b32 v28, v12 offset:{yo}")
        a(f"ds_read_b32 v29, v12 offset:{yo+1024}")
        a(f"ds_read_b32 v30, v12 offset:{yo+2048}")
        a(f"ds_read_b32 v31, v12 offset:{yo+3072}")
        a("s_add_u32 s28, s28, 1")
        a("s_waitcnt lgkmcnt(0)")
        a("v_max3_u32 v17, v28, v29, v30")
        a("v_max_u32 v17, v17, v31")
        a("v_cmp_eq_u32 vcc, -1, v17")
        a("s_cmp_gt_u32 s28, 0x400000")
        a(f"s_cbranch_scc1 L_ygo{t}")
        a(f"s_cbranch_vccz L_ygo{t}")
        a("s_sleep 1")
        a(f"s_branch L_ypoll{t}")
        a.label(f"L_ygo{t}")
        xo = (7 - t) * 512
        a(f"ds_read_u16_d16_hi v20, v14 offset:{xo}")
        a(f"ds_read_u16_d16_hi v21, v14 offset:{xo+XUNIT}")
        a(f"ds_read_u16_d16_hi v22, v14 offset:{xo+2*XUNIT}")
        a(f"ds_read_u16_d16_hi v23, v14 offset:{xo+3*XUNIT}")
        a(f"v_add_u32 v18, {t*256*1024}, v15")
        round_pair(a, 28, 28, 40)
        round_pair(a, 30, 30, 41)
        if t == 0:
            a("s_waitcnt vmcnt(0)")
        a(f"v_sub_f32 v33, 1.0, v{48+t}")
        a("v_cvt_pk_bf16_f32 v42, v33, v33")
        a("v_and_b32 v33, 0xffff0000, v42")
        a("s_waitcnt lgkmcnt(0)")
        a("v_pk_mul_f32 v[34:35], v[20:21], v[24:25]")
        a("v_pk_mul_f32 v[36:37], v[22:23], v[26:27]")
        round_pair(a, 34, 34, 40)
        round_pair(a, 36, 36, 41)
        a("v_pk_add_f32 v[28:29], v[28:29], v[34:35]")
        a("v_pk_add_f32 v[30:31], v[30:31], v[36:37]")
        round_pair(a, 28, 28, 40)
        round_pair(a, 30, 30, 41)
        a("v_pk_mul_f32 v[28:29], v[28:29], v[22:23]")
        a("v_mul_f32 v30, v30, v33")
        a("v_mul_f32 v31, v31, v33")
        round_pair(a, 28, 28, 40)
        round_pair(a, 30, 30, 41)
        a(f"v_mul_f32 v28, v28, v{48+t}")
        a(f"v_mul_f32 v29, v29, v{48+t}")
        round_pair(a, 28, 28, 40)
        a("v_pk_add_f32 v[28:29], v[28:29], v[30:31]")
        a("v_cvt_pk_bf16_f32 v19, v28, v29")
        a("global_store_dword v18, v19, s[36:37]")
        if t == 3:
            stamp(11)
    if st:
        a("s_waitcnt vmcnt(0)")
    stamp(12)
    a.label("L_fin")
    if st:
        n = 13
        a("s_waitcnt lgkmcnt(0)")
        a("s_lshl_b32 s58, s2, 3")
        a("s_add_u32 s58, s58, s14")
        a("s_lshl_b32 s58, s58, 6")
        a(f"s_add_u32 s58, s58, {STAMP_OFF}")
        a("v_mov_b32 v1, s58")
        a("s_mov_b64 exec, 1")
        for i in range(n):
            a(f"v_mov_b32 v2, s{76+2*i}")
            a(f"global_store_dword v1, v2, s[34:35] offset:{4*i}")
        a("s_mov_b64 exec, -1")
    a.label("L_end")
    a("s_endpgm")
    return kernel_wrap(name, a.text(), vgpr=256)


def full_source(**kw):
    hdr = open("gated_mix__ssm_conv_h3__ssm_conv_s4__prompt.s.ref").read().split("; @launch")[0]
    src = hdr + f"; @launch grid=(256,1,1) block=(512,1,1) lds={LDS_TOTAL}\n"
    src += '.amdgcn_target "amdgcn-amd-amdhsa--gfx950"\n'
    src += gen_fused(KN, **kw)
    return src


if __name__ == "__main__":
    out = sys.argv[1]
    kw = {}
    for x in sys.argv[2:]:
        k, v = x.split("=")
        kw[k] = {"0": False, "1": True}.get(v, v)
    open(out, "w").write(full_source(**kw))
```

```python
from gen import vr

def order_v2():
    o = []
    for u in range(4):
        for r in range(8):
            for i in range(0, 4 - u):
                o.append((u + i, i, r))
    for u in range(7, 0, -1):
        for r in range(8):
            for i in range(4):
                t = u + i
                if 4 <= t <= 7:
                    o.append((t, i, r))
    for u in range(4):
        for r in range(8):
            for i in range(4, 8):
                t = u + i
                if t <= 7:
                    o.append((t, i, r))
    assert len(o) == 288 and len(set(o)) == 288
    return o


class Stream:
    def __init__(self, a, order, vA, vB, vY, frag_base, nslots, acc_base, preload=(),
                 credit_per_slot=4.0, costA=4.8, costB=4.0, costW=8.0, horizon=48, urgent=10, safe_slots=9,
                 max_aux=2, vF=None, vOne=None):
        self.a = a
        self.vF, self.vOne = vF, vOne
        self.order = order
        self.vA, self.vB, self.vY = vA, vB, vY
        self.fb, self.ns, self.ab = frag_base, nslots, acc_base
        self.N = len(order)
        self.need = [(('A', 8 * i + r), ('B', 8 * (t - i) - r)) for (t, i, r) in order]
        self.uses = {}
        for k, fs in enumerate(self.need):
            for f in fs:
                self.uses.setdefault(f, []).append(k)
        self.slot_of = {}
        self.slot_frag = [None] * nslots
        self.preload = list(preload)
        for s, f in enumerate(self.preload):
            self.slot_of[f] = s
            self.slot_frag[s] = f
        self.p = dict(cps=credit_per_slot, cA=costA, cB=costB, cW=costW, hor=horizon, urg=urgent, safe=safe_slots,
                      maxaux=max_aux)

    def reg(self, f):
        return self.fb + 4 * self.slot_of[f]

    def emit_load(self, f):
        a = self.a
        reg = self.reg(f)
        if f[0] == 'A':
            off = 64 * f[1]
            a(f"ds_read_b64 {vr(reg,2)}, {vr(self.vA)} offset:{off}")
            a(f"ds_read_b64 {vr(reg+2,2)}, {vr(self.vA)} offset:{off+8}")
            return 2
        off = 3584 - 64 * f[1]
        a(f"ds_read_b128 {vr(reg,4)}, {vr(self.vB)} offset:{off}")
        return 1

    def emit_preload(self):
        for f in self.preload:
            self.emit_load(f)

    def next_use(self, f, k):
        for x in self.uses[f]:
            if x >= k:
                return x
        return 1 << 30

    def run(self):
        a, N, p = self.a, self.N, self.p
        last_of_tile, first_of_tile = {}, {}
        for k, (t, i, r) in enumerate(self.order):
            last_of_tile[t] = k
            first_of_tile.setdefault(t, k)
        ds_seq = 0
        seq_slot = []
        load_seq = {f: -1 for f in self.preload}
        done_upto = 0
        credit = 8.0
        pending_w = []
        icount = 0
        nloads = 0
        nwaits = 0
        for k in range(N):
            aux = 0
            credit = min(credit + p['cps'], 12.0) if k > 0 else 40.0
            maxaux = p['maxaux'] if k > 0 else 24
            for pw in list(pending_w):
                if icount >= pw[1] and aux < maxaux:
                    t = pw[0]
                    a(f"ds_write_b128 {vr(self.vY)}, {vr(self.ab+4*t,4)} offset:{t*4096}")
                    icount += 1; aux += 1
                    seq_slot.append(k); ds_seq += 1
                    credit -= p['cW']
                    if self.vF is not None:
                        a(f"ds_write_b32 {vr(self.vF)}, {vr(self.vOne)} offset:{t*1024}")
                        icount += 1; aux += 1
                        seq_slot.append(k); ds_seq += 1
                        credit -= 2
                    pending_w.remove(pw)
            while True:
                cand = None
                for kk in range(k, min(N, k + p['hor'])):
                    for f in self.need[kk]:
                        if f not in self.slot_of:
                            cand = (f, kk)
                            break
                    if cand:
                        break
                if cand is None:
                    break
                f, kk = cand
                must = (kk == k)
                urgent = (kk - k) <= p['urg']
                cost = p['cA'] if f[0] == 'A' else p['cB']
                ninstr = 2 if f[0] == 'A' else 1
                if not must:
                    if aux + ninstr > maxaux + (1 if (urgent and ninstr == 2 and aux == 1) else 0):
                        break
                    if credit < cost and not (urgent and credit > -4):
                        break
                free = [s for s in range(self.ns) if self.slot_frag[s] is None]
                if free:
                    s = free[0]
                else:
                    best, bu = None, -1
                    for s2 in range(self.ns):
                        nu = self.next_use(self.slot_frag[s2], k)
                        if nu > bu:
                            best, bu = s2, nu
                    if bu < (1 << 30):
                        if not (urgent and bu > kk):
                            if must:
                                raise RuntimeError("no slot")
                            break
                    s = best
                    del self.slot_of[self.slot_frag[s]]
                self.slot_frag[s] = f
                self.slot_of[f] = s
                n = self.emit_load(f)
                icount += n; aux += n
                for _ in range(n):
                    seq_slot.append(k)
                ds_seq += n
                load_seq[f] = ds_seq - 1
                credit -= cost
                nloads += 1
            fa, fb = self.need[k]
            lastseq = max(load_seq[fa], load_seq[fb])
            if lastseq >= done_upto:
                n_need = ds_seq - 1 - lastseq
                n_opp = sum(1 for s in seq_slot if s > k - p['safe'])
                n = min(n_need, n_opp) if k > 0 else n_need
                n = min(n, 15)
                a(f"s_waitcnt lgkmcnt({n})")
                icount += 1
                nwaits += 1
                done_upto = ds_seq - n
            t, i, r = self.order[k]
            acc = vr(self.ab + 4 * t, 4)
            srcc = "0" if first_of_tile[t] == k else acc
            a(f"v_mfma_f32_16x16x32_bf16 {acc}, {vr(self.reg(fa),4)}, {vr(self.reg(fb),4)}, {srcc}")
            icount += 1
            if last_of_tile[t] == k:
                pending_w.append((t, icount + 8))
        for (t, at) in sorted(pending_w, key=lambda x: x[1]):
            n = at - icount
            while n > 0:
                d = min(n, 16)
                a(f"s_nop {d-1}")
                icount += d
                n -= d
            a(f"ds_write_b128 {vr(self.vY)}, {vr(self.ab+4*t,4)} offset:{t*4096}")
            icount += 1
            if self.vF is not None:
                a(f"ds_write_b32 {vr(self.vF)}, {vr(self.vOne)} offset:{t*1024}")
                icount += 1
        return dict(loads=nloads, waits=nwaits, instrs=icount)


def order_v3(steps2=((7, 5), (6, 2), (4,), (3, 1)), steps3=((0,), (1, 3), (2,))):
    o = []
    for u in range(4):
        for r in range(8):
            for i in range(0, 4 - u):
                o.append((u + i, i, r))
    for st in steps2:
        for r in range(8):
            for u in st:
                for i in range(4):
                    t = u + i
                    if 4 <= t <= 7:
                        o.append((t, i, r))
    for st in steps3:
        for r in range(8):
            for u in st:
                for i in range(4, 8):
                    t = u + i
                    if t <= 7:
                        o.append((t, i, r))
    assert len(o) == 288 and len(set(o)) == 288
    return o
```

```python
import sys
from gen import Asm, vr, sr, kernel_wrap, KA, KN, XKV_OFF, XQ_OFF, G_OFF, KCOPY, KUNIT, XUNIT, round_pair, stage_chunk_write
from gen_prep import fbits, zpow, dpp_reduce, L2E_HI, L2E_LO, LN2, TABROW, TABCH
from sched import Stream, order_v3

KBASE = 0
TBASE = 2 * KUNIT
R2 = 4 * KUNIT
XBASE = R2
YBASE = XBASE + 4 * XUNIT
FBASE = YBASE + 32768
TAB = R2
KTAB = TAB + 2 * TABCH
NBASE = KTAB + 2 * 1536
LDS_TOTAL = NBASE + 64
STAMP_OFF = 16 << 20
FL_OFF = 7 << 20


def gen_fused(name, st=0, scx="sc1", scl="sc1", stream_kw=None, pf=False, pfwave=7):
    a = Asm()
    st = int(st)

    def stamp(i):
        if st == 1 or (st > 1 and (st >> (i + 1)) & 1):
            a(f"s_memrealtime s[{76+2*i}:{77+2*i}]")

    def cmul2(d, x, y, ny):
        a(f"v_mul_f32 {vr(d)}, {vr(x)}, {vr(y)}")
        a(f"v_mul_f32 {vr(d+1)}, {vr(x)}, {vr(y+1)}")
        a(f"v_fmac_f32 {vr(d)}, {vr(x+1)}, {vr(ny)}")
        a(f"v_fmac_f32 {vr(d+1)}, {vr(x+1)}, {vr(y)}")

    def neg(d, s):
        a(f"v_xor_b32 {vr(d)}, 0x80000000, {vr(s)}")

    def wr_u(addr, x, row, t):
        a(f"v_cvt_pk_f16_f32 {vr(t)}, {vr(x)}, -{vr(x+1)}")
        a(f"ds_write_b32 {vr(addr)}, {vr(t)} offset:{row*TABROW}")

    def wr_v(addr, x, r, t):
        a(f"v_cvt_pk_f16_f32 {vr(t)}, {vr(x)}, {vr(x+1)}")
        a(f"ds_write_b32 {vr(addr)}, {vr(t)} offset:{(48+r)*TABROW}")

    def front_fix(vD, vT, vLds):
        for j in range(16):
            a(f"v_mov_b32 {vr(vT+j)}, 0")
        a(f"v_subrev_u32 {vr(vT+16)}, 32, {vr(vLds)}")
        a(f"v_lshlrev_b32 {vr(vT+7)}, 16, {vr(vD)}")
        a(f"v_mov_b32 {vr(vT+11)}, {vr(vD)}")
        a(f"v_lshlrev_b32 {vr(vT+14)}, 16, {vr(vD)}")
        a(f"v_alignbit_b32 {vr(vT+15)}, {vr(vD+1)}, {vr(vD)}, 16")
        for c in range(4):
            a(f"ds_write_b128 {vr(vT+16)}, {vr(vT,4)} offset:{c*KCOPY}")
        for c in range(4):
            a(f"ds_write_b128 {vr(vT+16)}, {vr(vT+4*c,4)} offset:{c*KCOPY+16}")

    def poll_guard(cnt_reg, lim, done):
        a(f"s_cmp_gt_u32 {cnt_reg}, {lim}")
        a(f"s_cbranch_scc1 {done}")

    def gather_addr():
        a("v_and_b32 v206, 255, v0")
        a("v_lshlrev_b32 v206, 3, v206")
        a("v_lshrrev_b32 v207, 8, v0")
        a(f"v_mul_u32_u24 v207, 1536, v207")
        a(f"v_add_u32 v207, {KTAB}, v207")
        a("v_mov_b32 v208, 127")
        for e in range(0, 12, 2):
            a(f"v_add_u32 v209, {e}, v206")
            a(f"v_add_u32 v210, {e+1}, v206")
            a("v_cvt_f32_u32 v211, v209")
            a("v_cvt_f32_u32 v212, v210")
            a("v_cvt_pk_bf16_f32 v211, v211, v212")
            a("v_and_b32 v212, 0xffff, v211")
            a("v_lshrrev_b32 v211, 16, v211")
            a("v_subrev_u32 v212, 17024, v212")
            a("v_subrev_u32 v211, 17024, v211")
            a("v_med3_i32 v212, v209, v208, v212")
            a("v_med3_i32 v211, v210, v208, v211")
            a(f"v_lshl_add_u32 v{140+e}, v212, 1, v207")
            a(f"v_lshl_add_u32 v{141+e}, v211, 1, v207")
        a("v_lshrrev_b32 v210, 8, v0")
        a(f"v_mul_u32_u24 v210, {KUNIT}, v210")
        a("v_and_b32 v211, 255, v0")
        a("v_lshl_add_u32 v210, v211, 4, v210")
        a(f"v_add_u32 v52, {KBASE+32+2*KUNIT}, v210")

    stamp(0)
    a("s_cmp_ge_u32 s2, 256")
    a("s_cbranch_scc1 L_end")
    a("s_load_dwordx8 s[4:11], s[0:1], 0")
    a("s_load_dwordx4 s[40:43], s[0:1], 32")
    a("s_load_dwordx16 s[16:31], s[0:1], 56")
    a("s_load_dwordx2 s[32:33], s[0:1], 120")
    a("s_load_dwordx4 s[36:39], s[0:1], 128")
    a("s_load_dwordx2 s[34:35], s[0:1], 144")
    a("v_lshrrev_b32 v1, 6, v0")
    a("v_and_b32 v2, 63, v0")
    a("v_readfirstlane_b32 s14, v1")
    a("s_and_b32 s12, s2, 7")
    a("s_lshr_b32 s13, s2, 3")
    a("s_lshl_b32 s15, s12, 5")
    a("s_add_u32 s15, s15, s13")
    a("s_lshl_b32 s66, s15, 2")
    a("v_lshlrev_b32 v53, 4, v2")
    if pf:
        a(f"s_cmp_lg_u32 s14, {pfwave}")
        a("s_cbranch_scc1 L_nopf")
        a("s_getpc_b64 s[98:99]")
        a.label("L_pc")
        a("v_lshlrev_b32 v200, 7, v2")
        a("v_mov_b32 v205, s99")
        a("v_add_u32 v201, 8192, v200")
        a("v_min_u32 v201, L_end-L_pc, v201")
        a("v_add_co_u32 v202, vcc, s98, v200")
        a("v_addc_co_u32 v203, vcc, 0, v205, vcc")
        a("v_add_co_u32 v204, vcc, s98, v201")
        a("v_addc_co_u32 v205, vcc, 0, v205, vcc")
        a("global_load_dword v206, v[202:203], off")
        a("global_load_dword v207, v[204:205], off")
        a.label("L_nopf")
    a("s_cmp_lt_u32 s14, 4")
    a("s_cbranch_scc1 L_Tfront")
    a("s_lshl_b32 s60, s12, 7")
    a("s_lshl_b32 s61, s13, 16")
    a("s_add_u32 s62, s60, s61")
    a("v_bfe_u32 v3, v0, 4, 4")
    a("v_and_b32 v54, 15, v0")
    a("v_lshlrev_b32 v55, 12, v3")
    a("v_lshlrev_b32 v56, 3, v54")
    a("v_add3_u32 v55, v55, v56, s62")
    a("v_subrev_u32 v56, 1024, v55")
    a("v_subrev_u32 v57, 2048, v55")
    a("v_subrev_u32 v58, 3072, v55")
    a("v_lshlrev_b32 v59, 5, v54")
    a("s_lshl_b32 s63, s12, 9")
    a("v_add_u32 v59, s63, v59")
    a("s_waitcnt lgkmcnt(0)")
    stamp(1)
    for (srd, p) in ((44, 4), (48, 6), (52, 8)):
        a(f"s_mov_b32 s{srd}, s{p}")
        a(f"s_mov_b32 s{srd+1}, s{p+1}")
        a(f"s_mov_b32 s{srd+2}, {2<<20}")
        a(f"s_mov_b32 s{srd+3}, 0x20000")
    a("buffer_load_dwordx2 v[12:13], v58, s[48:51], 0 offen")
    a("buffer_load_dwordx2 v[14:15], v57, s[48:51], 0 offen")
    a("buffer_load_dwordx2 v[16:17], v56, s[48:51], 0 offen")
    for j in range(4):
        a(f"buffer_load_dwordx2 v[{18+2*j}:{19+2*j}], v55, s[48:51], 0 offen offset:{1024*j}")
    a("global_load_dwordx4 v[34:37], v59, s[10:11]")
    a("global_load_dwordx4 v[38:41], v59, s[10:11] offset:16")
    for j in range(4):
        a(f"buffer_load_dwordx2 v[{26+2*j}:{27+2*j}], v55, s[52:55], 0 offen offset:{1024*j}")
    for j in range(4):
        a(f"buffer_load_dwordx2 v[{4+2*j}:{5+2*j}], v55, s[44:47], 0 offen offset:{1024*j}")
    a("s_load_dword s68, s[42:43], s66")
    a("s_load_dword s69, s[30:31], s66")
    a("v_lshlrev_b32 v60, 1, v3")
    a("v_sub_u32 v60, 30, v60")
    a("v_lshrrev_b32 v61, 2, v60")
    a("v_and_b32 v62, 7, v54")
    a("v_xor_b32 v61, v61, v62")
    a("v_lshlrev_b32 v61, 4, v61")
    a("v_and_b32 v60, 3, v60")
    a("v_lshl_add_u32 v61, v60, 2, v61")
    a("v_lshl_add_u32 v42, v54, 9, v61")
    a(f"v_add_u32 v42, {TBASE}, v42")
    a("v_bfe_u32 v60, v0, 3, 5")
    a("v_and_b32 v61, 7, v0")
    a("v_lshrrev_b32 v62, 2, v60")
    a("v_xor_b32 v62, v61, v62")
    a("v_lshlrev_b32 v62, 4, v62")
    a("v_lshl_add_u32 v43, v60, 7, v62")
    a(f"v_add_u32 v43, {TBASE}, v43")
    a("v_lshlrev_b32 v60, 12, v60")
    a("v_lshl_add_u32 v44, v61, 4, v60")
    a("s_lshl_b32 s61, s12, 18")
    a("s_lshl_b32 s3, s13, 7")
    a("s_sub_u32 s61, s61, s3")
    a("s_add_u32 s61, s61, 3968")
    a("v_add_u32 v44, s61, v44")
    a("v_add_u32 v45, 0x20000, v44")
    a(f"s_add_u32 s70, s34, {XKV_OFF}")
    a("s_addc_u32 s71, s35, 0")
    a(f"s_add_u32 s72, s34, {XQ_OFF}")
    a("s_addc_u32 s73, s35, 0")
    a("s_lshl_b32 s61, s15, 13")
    a("s_add_u32 s56, s40, s61")
    a("s_addc_u32 s57, s41, 0")
    a("s_mov_b32 s58, 8192")
    a("s_mov_b32 s59, 0x20000")
    a("v_and_b32 v46, 255, v0")
    a("v_lshlrev_b32 v46, 4, v46")
    a("v_add_u32 v47, 4096, v46")
    a(f"v_add_u32 v48, {KBASE+32}, v46")
    a(f"v_add_u32 v49, {KUNIT}, v48")
    gather_addr()
    a("s_mov_b32 s62, 0x05040100")
    a("s_mov_b32 s63, 0x07060302")
    KU, W, AC, VU = 60, 88, 104, 120
    a("s_waitcnt vmcnt(10)")
    for row in range(7):
        for e in range(2):
            src = 12 + 2 * row + e
            a(f"v_lshlrev_b32 v{KU+4*row+2*e}, 16, v{src}")
            a(f"v_and_b32 v{KU+4*row+2*e+1}, 0xffff0000, v{src}")
    a("s_waitcnt vmcnt(8)")
    for e in range(2):
        s0, s1, s2_, s3 = 34 + 4 * e, 35 + 4 * e, 36 + 4 * e, 37 + 4 * e
        a(f"v_lshlrev_b32 v{W+0+2*e}, 16, v{s0}")
        a(f"v_lshlrev_b32 v{W+0+2*e+1}, 16, v{s2_}")
        a(f"v_and_b32 v{W+4+2*e}, 0xffff0000, v{s0}")
        a(f"v_and_b32 v{W+4+2*e+1}, 0xffff0000, v{s2_}")
        a(f"v_lshlrev_b32 v{W+8+2*e}, 16, v{s1}")
        a(f"v_lshlrev_b32 v{W+8+2*e+1}, 16, v{s3}")
        a(f"v_and_b32 v{W+12+2*e}, 0xffff0000, v{s1}")
        a(f"v_and_b32 v{W+12+2*e+1}, 0xffff0000, v{s3}")
    chains = [(row, e) for row in range(4) for e in range(2)]
    def acc(row, e): return AC + 4 * row + 2 * e
    for (row, e) in chains:
        a(f"v_pk_mul_f32 {vr(acc(row,e),2)}, {vr(KU+4*(row+0)+2*e,2)}, {vr(W+12+2*e,2)}")
    for j in (2, 1, 0):
        for (row, e) in chains:
            a(f"v_pk_fma_f32 {vr(acc(row,e),2)}, {vr(KU+4*(row+3-j)+2*e,2)}, {vr(W+4*j+2*e,2)}, {vr(acc(row,e),2)}")
    a("s_waitcnt vmcnt(4)")
    stamp(2)
    for row in range(4):
        for e in range(2):
            src = 26 + 2 * row + e
            a(f"v_lshlrev_b32 v{VU+4*row+2*e}, 16, v{src}")
            a(f"v_and_b32 v{VU+4*row+2*e+1}, 0xffff0000, v{src}")
    for (row, e) in chains:
        a(f"v_pk_mul_f32 {vr(acc(row,e),2)}, {vr(acc(row,e),2)}, {vr(VU+4*row+2*e,2)}")
    for j in range(4):
        e, x = j >> 1, j & 1
        a(f"v_cvt_pk_bf16_f32 v{60+2*j}, v{acc(3,e)+x}, v{acc(2,e)+x}")
        a(f"v_cvt_pk_bf16_f32 v{61+2*j}, v{acc(1,e)+x}, v{acc(0,e)+x}")
    for j in range(4):
        a(f"ds_write_b64 v42, v[{60+2*j}:{61+2*j}] offset:{j*128}")
    a("s_waitcnt vmcnt(0)")
    for j in range(4):
        e, x = j >> 1, j & 1
        a(f"v_perm_b32 v{68+2*j}, v{4+2*2+e}, v{4+2*3+e}, s{62+x}")
        a(f"v_perm_b32 v{69+2*j}, v{4+2*0+e}, v{4+2*1+e}, s{62+x}")
    for j in range(4):
        a(f"ds_write_b64 v42, v[{68+2*j}:{69+2*j}] offset:{8192 + j*128}")
    a("s_waitcnt lgkmcnt(0)")
    a("s_barrier")
    stamp(3)
    a("ds_read_b128 v[112:115], v43")
    a("ds_read_b128 v[116:119], v43 offset:8192")
    a("ds_read_b128 v[120:123], v43 offset:4096")
    a("ds_read_b128 v[124:127], v43 offset:12288")
    a("buffer_load_dwordx4 v[20:23], v46, s[56:59], 0 offen")
    a("buffer_load_dwordx2 v[24:25], v46, s[56:59], 0 offen offset:16")
    a("buffer_load_dwordx4 v[32:35], v47, s[56:59], 0 offen")
    a("buffer_load_dwordx2 v[36:37], v47, s[56:59], 0 offen offset:16")
    a("s_waitcnt lgkmcnt(3)")
    a(f"global_store_dwordx4 v44, v[112:115], s[70:71] {scx}")
    a("s_waitcnt lgkmcnt(2)")
    a(f"global_store_dwordx4 v44, v[116:119], s[72:73] {scx}")
    a("s_waitcnt lgkmcnt(1)")
    a(f"global_store_dwordx4 v45, v[120:123], s[70:71] {scx}")
    a("s_waitcnt lgkmcnt(0)")
    a(f"global_store_dwordx4 v45, v[124:127], s[72:73] {scx}")
    stamp(4)
    a("s_branch L_front_done")

    a.label("L_Tfront")
    a("s_and_b32 s64, s14, 1")
    a("s_lshr_b32 s65, s14, 1")
    for j in range(40, 50):
        a(f"v_mov_b32 v{j}, 0")
    a("s_lshl_b32 s61, s15, 1")
    a("s_add_u32 s61, s61, s64")
    a("s_lshl_b32 s61, s61, 8")
    a("s_lshl_b32 s3, s65, 7")
    a("v_lshlrev_b32 v68, 1, v2")
    a("v_add_u32 v69, s61, v68")
    a("v_add_u32 v68, s3, v69")
    a("v_xor_b32 v69, 128, v68")
    a("s_lshl_b32 s60, s2, 3")
    a("s_lshl_b32 s3, s14, 1")
    a("s_add_u32 s60, s60, s3")
    a("s_lshl_b32 s3, s60, 10")
    a("v_add_u32 v54, s3, v53")
    a("s_waitcnt lgkmcnt(0)")
    stamp(1)
    a("s_load_dword s67, s[28:29], s66")
    for j, p in enumerate((16, 18, 20, 22, 24, 26)):
        a(f"global_load_short_d16_hi v{40+j}, v68, s[{p}:{p+1}]")
    for j, p in enumerate((20, 22, 24, 26)):
        a(f"global_load_short_d16_hi v{46+j}, v69, s[{p}:{p+1}]")
    a("s_or_b32 s3, s2, s14")
    a("s_cmp_lg_u32 s3, 0")
    a("s_cbranch_scc1 L_nononce")
    a("s_memrealtime s[56:57]")
    a("v_mov_b32 v136, 0")
    a("s_waitcnt lgkmcnt(0)")
    a("s_or_b32 s56, s56, 1")
    a("v_mov_b32 v137, s56")
    a("s_mov_b64 exec, 1")
    a("global_store_dword v136, v137, s[38:39] sc1")
    a("s_mov_b64 exec, -1")
    a.label("L_nononce")
    gather_addr()
    a("s_waitcnt vmcnt(0) lgkmcnt(0)")
    stamp(2)
    a("global_load_dwordx4 v[4:7], v54, s[4:5]")
    a("global_load_dwordx4 v[8:11], v54, s[4:5] offset:1024")
    a("global_load_dwordx4 v[12:15], v53, s[32:33]")
    a("s_lshl_b32 s3, s67, 16")
    a("s_and_b32 s61, s67, 0xffff0000")
    a("s_cmp_eq_u32 s64, 0")
    a("s_cselect_b32 s3, s3, s61")
    a("v_mov_b32 v60, s3")
    a(f"v_mul_f32 v61, 0x{L2E_HI:08x}, v60")
    a(f"s_mov_b32 s61, 0x{L2E_HI:08x}")
    a("v_fma_f32 v62, v60, s61, -v61")
    a(f"v_mov_b32 v63, 0x{L2E_LO:08x}")
    a("v_fmac_f32 v62, v60, v63")
    a("v_exp_f32 v61, v61")
    a(f"v_mul_f32 v62, 0x{LN2:08x}, v62")
    a("v_fma_f32 v61, v61, v62, v61")
    a("v_cvt_pk_bf16_f32 v61, v61, v61")
    a("v_and_b32 v61, 0xffff0000, v61")
    a("v_mul_f32 v62, v61, v40")
    a("v_mul_f32 v63, v61, v41")
    a(f"v_mul_f32 v62, 0x{L2E_HI:08x}, v62")
    a("v_mul_f32 v63, 0.15915494, v63")
    for (dst, b, cc) in ((64, 42, 44), (66, 46, 48)):
        a(f"v_mul_f32 v68, v61, v{b}")
        a(f"v_mul_f32 v69, v61, v{b+1}")
        neg(70, 69)
        cmul2(dst, cc, 68, 70)
    a("v_max_f32 v68, |v64|, |v65|")
    a("v_max3_f32 v68, |v66|, |v67|, v68")
    zpow(a, 74, 75, 62, 63, 128, 70, 71)
    dpp_reduce(a, "v_max_f32", 68)
    neg(76, 75)
    a("v_readlane_b32 s74, v68, 63")
    a(f"s_mul_i32 s75, s64, {TABCH}")
    a(f"s_max_u32 s74, s74, {fbits(1e-30)}")
    a("v_mov_b32 v68, s74")
    a("v_rcp_f32 v69, v68")
    a(f"s_add_u32 s75, s75, {TAB}")
    a("s_lshl_b32 s3, s65, 8")
    a("s_add_u32 s3, s3, s75")
    a("v_mul_f32 v64, v64, v69")
    a("v_mul_f32 v65, v65, v69")
    a("v_lshlrev_b32 v72, 2, v2")
    a("v_add_u32 v72, s3, v72")
    a("s_lshl_b32 s3, s64, 2")
    a(f"s_add_u32 s3, s3, {NBASE+4}")
    a("v_mov_b32 v69, s3")
    a("ds_write_b32 v69, v68")
    grow = {0: 0, 1: 8, 2: 16, 3: 20, 4: 24, 5: 26, 6: 28, 7: 30}
    for h in range(8, 17):
        grow[h] = 32 + h - 8
    zpow(a, 78, 79, 62, 63, 8, 70, 71)
    neg(80, 79)
    ZB = 100
    def Z(d): return ZB + 4 * (d - 1)
    zpow(a, Z(1), Z(1) + 1, 62, 63, 1, 70, 71)
    neg(Z(1) + 2, Z(1) + 1)
    for (d, x, y) in ((2, 1, 1), (3, 2, 1), (4, 2, 2), (5, 4, 1), (6, 4, 2), (7, 4, 3)):
        cmul2(Z(d), Z(x), Z(y), Z(y) + 2)
        neg(Z(d) + 2, Z(d) + 1)
    a("v_mov_b32 v82, 1.0")
    a("v_mov_b32 v83, 0")
    wr_v(72, 82, 0, 73)
    wr_v(72, 78, 1, 77)
    cv, cg = 78, 64
    tog = 0
    for h in range(0, 17):
        if h > 0:
            ng = 86 if cg != 86 else 88
            cmul2(ng, cg, 74, 76)
            cg = ng
        if 1 <= h <= 14:
            nv = 82 if cv != 82 else 84
            cmul2(nv, cv, 78, 80)
            cv = nv
        wr_u(72, cg, grow[h], 73)
        if 1 <= h <= 14:
            wr_v(72, cv, h + 1, 77)
        if h < 2:
            ds = [(d, grow[h] + d) for d in range(1, 8)]
        elif h < 4:
            ds = [(2, grow[h] + 1), (4, grow[h] + 2), (6, grow[h] + 3)]
        elif h < 8:
            ds = [(4, grow[h] + 1)]
        else:
            ds = []
        for (d, row) in ds:
            dst = 90 + 2 * tog
            cmul2(dst, cg, Z(d), Z(d) + 2)
            wr_u(72, dst, row, 94 + tog)
            tog ^= 1
        if h == 8:
            a("v_mov_b32 v136, 0")
            a("global_load_dword v137, v136, s[38:39] sc1") if False else None
    a("s_cmp_lg_u32 s14, 1")
    a("s_cbranch_scc1 L_nn1")
    a("v_mov_b32 v136, 0")
    a("global_load_dword v137, v136, s[38:39] sc1")
    a.label("L_nn1")
    stamp(3)
    a("s_waitcnt lgkmcnt(0)")
    a("s_barrier")
    stamp(4)

    a.label("L_front_done")
    a(f"v_mov_b32 v135, {NBASE}")
    a("ds_read_b96 v[132:134], v135")
    a("s_cmp_ge_u32 s14, 6")
    a("s_cbranch_scc1 L_jobdone")
    a("s_and_b32 s64, s14, 1")
    a("s_lshr_b32 s3, s14, 1")
    a(f"s_mul_i32 s75, s64, {TABCH}")
    a(f"s_add_u32 s75, s75, {TAB}")
    a("v_and_b32 v60, 15, v2")
    a("v_lshrrev_b32 v61, 4, v2")
    a(f"v_mul_u32_u24 v62, {TABROW}, v60")
    a("v_lshl_add_u32 v62, v61, 4, v62")
    a("v_add_u32 v62, s75, v62")
    a(f"s_mul_i32 s61, s3, {16*TABROW}")
    a("v_add_u32 v63, s61, v62")
    for kk in range(8):
        a(f"ds_read_b128 {vr(80+4*kk,4)}, v63 offset:{64*kk}")
        a(f"ds_read_b128 {vr(168+4*kk,4)}, v62 offset:{48*TABROW + 64*kk}")
    for kk in range(8):
        a(f"s_waitcnt lgkmcnt({14-2*kk})")
        if kk == 0:
            a("v_readfirstlane_b32 s74, v133")
            a("v_readfirstlane_b32 s75, v134")
        srcc = "0" if kk == 0 else "v[64:67]"
        a(f"v_mfma_f32_16x16x32_f16 v[64:67], {vr(80+4*kk,4)}, {vr(168+4*kk,4)}, {srcc}")
    a("s_cmp_eq_u32 s64, 0")
    a("s_cselect_b32 s74, s74, s75")
    a("s_mul_i32 s61, s64, 1536")
    a(f"s_add_u32 s61, s61, {KTAB}")
    a("s_nop 5")
    for r in range(4):
        a(f"v_mul_f32 v{64+r}, s74, v{64+r}")
    a("v_cvt_pk_bf16_f32 v68, v64, v65")
    a("v_cvt_pk_bf16_f32 v69, v66, v67")
    a("s_cmp_eq_u32 s3, 1")
    a("s_cbranch_scc1 L_job1")
    a("s_cmp_eq_u32 s3, 2")
    a("s_cbranch_scc1 L_job2")
    a("v_lshrrev_b32 v70, 1, v61")
    a("v_lshlrev_b32 v70, 8, v70")
    a("v_lshl_add_u32 v70, v60, 4, v70")
    a("v_and_b32 v71, 1, v61")
    a("v_lshl_add_u32 v70, v71, 3, v70")
    a("v_add_u32 v70, s61, v70")
    a("ds_write_b64 v70, v[68:69]")
    a("s_branch L_jobdone")
    a.label("L_job1")
    a("v_lshlrev_b32 v70, 7, v61")
    a("v_lshl_add_u32 v71, v60, 3, v70")
    a("v_lshl_add_u32 v72, v60, 2, v70")
    a("v_cmp_gt_u32 vcc, 2, v61")
    a("v_mov_b32 v73, 64")
    a("s_nop 1")
    a("v_cndmask_b32 v70, v72, v71, vcc")
    a("v_cndmask_b32 v73, v73, 4, vcc")
    a("v_add_u32 v70, s61, v70")
    a("v_add_u32 v73, v70, v73")
    a("ds_write_b32 v70, v68 offset:512")
    a("ds_write_b32 v73, v69 offset:512")
    a("s_branch L_jobdone")
    a.label("L_job2")
    a("v_lshlrev_b32 v70, 7, v61")
    a("v_lshl_add_u32 v70, v60, 1, v70")
    a("v_add_u32 v70, s61, v70")
    a("ds_write_b16 v70, v68 offset:1024")
    a("ds_write_b16_d16_hi v70, v68 offset:1056")
    a("ds_write_b16 v70, v69 offset:1088")
    a("ds_write_b16_d16_hi v70, v69 offset:1120")
    a.label("L_jobdone")
    a("s_waitcnt lgkmcnt(0)")
    a("s_barrier")
    stamp(5)
    for e in range(0, 12, 2):
        a(f"ds_read_u16 v{60+e//2}, v{140+e}")
        a(f"ds_read_u16_d16_hi v{68+e//2}, v{141+e}")
    a("s_and_b32 s20, s14, 3")
    a(f"s_mul_i32 s21, s20, {XUNIT}")
    a(f"s_add_u32 s21, s21, {XBASE}")
    a("s_and_b32 s3, s20, 1")
    a("s_lshl_b32 s61, s15, 1")
    a("s_add_u32 s61, s61, s3")
    a("s_lshl_b32 s61, s61, 12")
    a("s_lshr_b32 s3, s20, 1")
    a("s_cmp_eq_u32 s3, 0")
    a(f"s_cselect_b32 s3, {XKV_OFF}, {XQ_OFF}")
    a("s_add_u32 s61, s61, s3")
    a("s_lshr_b32 s3, s14, 2")
    a("s_lshl_b32 s3, s3, 11")
    a("s_add_u32 s61, s61, s3")
    a("s_add_u32 s22, s34, s61")
    a("s_addc_u32 s23, s35, 0")
    a("s_add_u32 s24, s21, s3")
    a("s_waitcnt lgkmcnt(0)")
    for e in range(6):
        a(f"v_and_b32 v{68+e}, 0xffff0000, v{68+e}")
        a(f"v_or_b32 v{60+e}, v{60+e}, v{68+e}")
    stage_chunk_write(a, 60, 80, 52)
    a("s_cmp_lg_u32 s20, 0")
    a("s_cbranch_scc1 L_nofront2")
    a("s_mov_b64 exec, 1")
    front_fix(60, 92, 52)
    a("s_mov_b64 exec, -1")
    a.label("L_nofront2")
    a("s_cmp_lt_u32 s14, 4")
    a("s_cbranch_scc1 L_Tmid")
    a("s_waitcnt vmcnt(6)")
    stage_chunk_write(a, 20, 112, 48)
    a("s_waitcnt vmcnt(4)")
    stage_chunk_write(a, 32, 124, 49)
    a("s_cmp_lg_u32 s14, 4")
    a("s_cbranch_scc1 L_nofront1")
    a("s_mov_b64 exec, 1")
    front_fix(20, 152, 48)
    front_fix(32, 172, 49)
    a("s_mov_b64 exec, -1")
    a.label("L_nofront1")
    a("s_sub_u32 s26, s14, 4")
    a("v_lshlrev_b32 v67, 8, v2")
    a(f"v_add_u32 v67, {FBASE}, v67")
    a("v_mov_b32 v72, 0")
    a("s_mov_b32 exec_hi, 0")
    a("ds_write_b32 v67, v72")
    a("s_mov_b64 exec, -1")
    a("s_lshl_b32 s3, s26, 6")
    a("v_add_u32 v10, s3, v2")
    a("v_lshrrev_b32 v11, 4, v10")
    a("v_bfe_u32 v12, v10, 2, 2")
    a("v_lshlrev_b32 v13, 1, v12")
    a("v_xor_b32 v11, v11, v13")
    a("v_lshlrev_b32 v11, 4, v11")
    a("v_lshl_add_u32 v11, v12, 8, v11")
    a("v_and_b32 v12, 3, v10")
    a("v_lshl_add_u32 v11, v12, 2, v11")
    a(f"v_add_u32 v12, {YBASE}, v11")
    a("v_lshlrev_b32 v13, 3, v10")
    a(f"v_add_u32 v13, {G_OFF}, v13")
    a("v_lshlrev_b32 v14, 1, v10")
    a(f"v_sub_u32 v14, {XBASE + 4094 - 3584}, v14")
    a("v_lshlrev_b32 v15, 10, v10")
    a("s_lshl_b32 s3, s15, 2")
    a("v_add_u32 v15, s3, v15")
    a("v_and_b32 v9, 3, v2")
    a("v_lshlrev_b32 v9, 8, v9")
    a(f"v_add_u32 v9, {FBASE}, v9")
    a("v_add_u32 v1, s24, v53")
    a("v_mov_b32 v7, v53")
    stamp(6)
    a("s_waitcnt vmcnt(0) lgkmcnt(0)")
    a("s_branch L_mid_done")
    a.label("L_Tmid")
    a("s_waitcnt vmcnt(0)")
    for e in range(4):
        a(f"v_lshlrev_b32 v{60+2*e}, 16, v{12+e}")
        a(f"v_and_b32 v{61+2*e}, 0xffff0000, v{12+e}")
    for rr in range(2):
        B = 68 + 8 * rr
        for e in range(4):
            a(f"v_lshlrev_b32 v{B+2*e}, 16, v{4+4*rr+e}")
            a(f"v_and_b32 v{B+2*e+1}, 0xffff0000, v{4+4*rr+e}")
    for rr in range(2):
        B = 68 + 8 * rr
        for e in range(8):
            a(f"v_mul_f32 v{B+e}, v{B+e}, v{60+e}")
    for rr in range(2):
        B = 68 + 8 * rr
        for e in range(4):
            round_pair(a, B + 2 * e, B + 2 * e, 84 + e)
    for rr in range(2):
        B = 68 + 8 * rr
        for (x, y) in ((0, 1), (2, 3), (4, 5), (6, 7), (0, 2), (4, 6), (0, 4)):
            a(f"v_add_f32 v{B+x}, v{B+x}, v{B+y}")
    for sh in (1, 2, 4, 8):
        a("s_nop 0")
        for B in (68, 76):
            a(f"v_add_f32_dpp v{B}, v{B}, v{B} row_shr:{sh} row_mask:0xf bank_mask:0xf bound_ctrl:0")
    a("s_nop 0")
    for B in (68, 76):
        a(f"v_add_f32_dpp v{B}, v{B}, v{B} row_bcast:15 row_mask:0xa bank_mask:0xf")
    a("s_nop 0")
    for B in (68, 76):
        a(f"v_add_f32_dpp v{B}, v{B}, v{B} row_bcast:31 row_mask:0xc bank_mask:0xf")
    a("v_cvt_pk_bf16_f32 v68, v68, v76")
    a("v_and_b32 v76, 0xffff0000, v68")
    a("v_lshlrev_b32 v68, 16, v68")
    for B in (68, 76):
        a(f"v_mul_f32 v{B}, {fbits(-1.4426950408889634)}, v{B}")
    for B in (68, 76):
        a(f"v_exp_f32 v{B}, v{B}")
    a("s_nop 0")
    for B in (68, 76):
        a(f"v_add_f32 v{B}, 1.0, v{B}")
    for B in (68, 76):
        a(f"v_rcp_f32 v{B}, v{B}")
    a("s_nop 0")
    a("v_cvt_pk_bf16_f32 v68, v68, v76")
    a("v_and_b32 v18, 0xffff0000, v68")
    a("v_lshlrev_b32 v16, 16, v68")
    a("s_cmp_lg_u32 s14, 1")
    a("s_cbranch_scc1 L_nonce_done")
    a("v_mov_b32 v136, 0")
    a("s_mov_b32 s28, 0")
    a.label("L_nonce_poll")
    a("v_readfirstlane_b32 s3, v137")
    a("s_add_u32 s28, s28, 1")
    poll_guard("s28", "0x100000", "L_nonce_got")
    a("s_cmp_lg_u32 s3, 0")
    a("s_cbranch_scc1 L_nonce_got")
    a("global_load_dword v137, v136, s[38:39] sc1")
    a("s_waitcnt vmcnt(0)")
    a("s_branch L_nonce_poll")
    a.label("L_nonce_got")
    a(f"v_mov_b32 v136, {NBASE}")
    a("ds_write_b32 v136, v137")
    a.label("L_nonce_done")
    for j in range(4):
        a(f"v_mov_b32 v{72+j}, 0")
    a("v_add_u32 v67, s21, v53")
    a("s_mov_b32 exec_hi, 0")
    a("ds_write_b128 v67, v[72:75] offset:4096")
    a("s_mov_b64 exec, -1")
    a(f"s_mul_i32 s25, s20, {KUNIT}")
    a("v_and_b32 v31, 15, v2")
    a("v_lshrrev_b32 v32, 4, v2")
    a("v_add_u32 v33, 1, v31")
    a("v_and_b32 v34, 3, v33")
    a("v_lshrrev_b32 v33, 2, v33")
    a(f"v_mul_u32_u24 v34, {KCOPY}, v34")
    a("v_lshlrev_b32 v33, 3, v33")
    a("v_lshlrev_b32 v35, 4, v32")
    a("v_add3_u32 v34, v34, v33, v35")
    a("v_add_u32 v4, s25, v34")
    a("v_sub_u32 v33, 15, v31")
    a("v_lshlrev_b32 v33, 5, v33")
    a("v_add3_u32 v5, v33, v35, s21")
    a("v_lshlrev_b32 v33, 1, v32")
    a("v_xor_b32 v33, v31, v33")
    a("v_lshlrev_b32 v33, 4, v33")
    a("v_lshl_add_u32 v33, v32, 8, v33")
    a("s_lshl_b32 s3, s20, 10")
    a(f"s_add_u32 s3, s3, {YBASE}")
    a("v_add_u32 v6, s3, v33")
    a("s_lshl_b32 s3, s20, 8")
    a(f"s_add_u32 s3, s3, {FBASE}")
    a("v_lshlrev_b32 v3, 2, v2")
    a("v_add_u32 v3, s3, v3")
    a("v_add_u32 v1, s24, v53")
    a("v_mov_b32 v7, v53")
    a("v_mov_b32 v0, 1")
    stamp(6)
    a("s_waitcnt lgkmcnt(0)")
    a.label("L_mid_done")
    a(f"v_mov_b32 v136, {NBASE}")
    a("s_barrier")
    stamp(7)
    a("ds_read_b32 v132, v136")
    a("s_cmp_ge_u32 s14, 4")
    a("s_cbranch_scc1 L_helper_go")
    kw = dict(credit_per_slot=3.5, horizon=80, safe_slots=12)
    kw.update(stream_kw or {})
    strm = Stream(a, order_v3(steps3=((0,), (1,), (2,), (3,))), 4, 5, 6, frag_base=40, nslots=54, acc_base=8,
                  preload=[('A', m) for m in range(32)], vF=3, vOne=0, **kw)
    a("s_waitcnt lgkmcnt(0)")
    a("v_readfirstlane_b32 s27, v132")
    a("s_lshl_b32 s3, s60, 3")
    a(f"s_add_u32 s3, s3, {G_OFF}")
    a("v_mov_b32 v62, s3")
    a("v_mov_b32 v17, s27")
    a("v_mov_b32 v19, s27")
    a("s_mov_b32 exec_lo, 0")
    a("s_mov_b32 exec_hi, 0x80000000")
    a("global_store_dwordx2 v62, v[16:17], s[34:35] sc1")
    a("global_store_dwordx2 v62, v[18:19], s[34:35] offset:8 sc1")
    a("s_mov_b64 exec, -1")
    a("s_nop 1")
    strm.emit_preload()
    a("s_barrier")
    stamp(8)
    a(f"global_load_dwordx4 v[8:11], v7, s[22:23] {scl}")
    a(f"global_load_dwordx4 v[12:15], v7, s[22:23] offset:1024 {scl}")
    a("s_waitcnt vmcnt(1)")
    a("ds_write_b128 v1, v[8:11]")
    a("s_waitcnt vmcnt(0)")
    a("ds_write_b128 v1, v[12:15] offset:1024")
    a("s_waitcnt lgkmcnt(0)")
    a("s_barrier")
    stamp(9)
    info = strm.run()
    sys.stderr.write(f"stream: {info}\n")
    stamp(10)
    a("s_branch L_fin")

    a.label("L_helper_go")
    a("s_waitcnt lgkmcnt(0)")
    a("v_readfirstlane_b32 s27, v132")
    a("s_cmp_lg_u32 s14, 7")
    a("s_cbranch_scc1 L_nosig1")
    a("s_lshl_b32 s3, s2, 7")
    a(f"s_add_u32 s3, s3, {FL_OFF}")
    a("v_mov_b32 v134, s3")
    a("v_mov_b32 v136, s27")
    a("v_mov_b32 v137, 0")
    a("s_mov_b64 exec, 1")
    a("global_store_dwordx2 v134, v[136:137], s[34:35] sc1")
    a("s_mov_b64 exec, -1")
    a.label("L_nosig1")
    for j in range(20, 24):
        a(f"v_mov_b32 v{j}, 0")
    a("s_lshl_b32 s3, s68, 16")
    a("v_mov_b32 v24, s3")
    a("s_and_b32 s3, s68, 0xffff0000")
    a("v_mov_b32 v25, s3")
    a("s_lshl_b32 s3, s69, 16")
    a("v_mov_b32 v26, s3")
    a("s_and_b32 s3, s69, 0xffff0000")
    a("v_mov_b32 v27, s3")
    a("s_cmp_lg_u32 s14, 4")
    a("s_cbranch_scc1 L_gload")
    a("v_lshlrev_b32 v16, 10, v2")
    a("s_lshl_b32 s3, s12, 7")
    a(f"s_add_u32 s3, s3, {FL_OFF}")
    a("v_add_u32 v16, s3, v16")
    a("s_mov_b32 s28, 0")
    a("s_mov_b32 exec_hi, 0")
    a.label("L_poll1")
    a("global_load_dword v17, v16, s[34:35] sc1")
    a("s_add_u32 s28, s28, 1")
    a("s_waitcnt vmcnt(0)")
    a("v_cmp_ne_u32 vcc, s27, v17")
    poll_guard("s28", "0x100000", "L_poll1_done")
    a("s_cbranch_vccnz L_poll1")
    a.label("L_poll1_done")
    a("s_mov_b64 exec, -1")
    a.label("L_gload")
    a("s_barrier")
    stamp(8)
    a(f"global_load_dwordx4 v[40:43], v7, s[22:23] {scl}")
    a(f"global_load_dwordx4 v[44:47], v7, s[22:23] offset:1024 {scl}")
    for t in range(8):
        a(f"v_add_u32 v16, {t*2048}, v13")
        a(f"global_load_dwordx2 v[{48+2*t}:{49+2*t}], v16, s[34:35] sc1")
    a("s_waitcnt vmcnt(9)")
    a("ds_write_b128 v1, v[40:43]")
    a("s_waitcnt vmcnt(8)")
    a("ds_write_b128 v1, v[44:47] offset:1024")
    a("s_waitcnt lgkmcnt(0)")
    a("s_barrier")
    stamp(9)
    a("s_waitcnt vmcnt(0)")
    a("s_mov_b32 s28, 0")
    a.label("L_poll2")
    a("v_xor_b32 v17, s27, v49")
    for t in range(1, 8):
        a(f"v_xor_b32 v16, s27, v{49+2*t}")
        a("v_or_b32 v17, v17, v16")
    a("v_cmp_ne_u32 vcc, 0, v17")
    a("s_add_u32 s28, s28, 1")
    poll_guard("s28", "0x100000", "L_poll2_done")
    a("s_cbranch_vccz L_poll2_done")
    for t in range(8):
        a(f"v_add_u32 v16, {t*2048}, v13")
        a(f"global_load_dwordx2 v[{48+2*t}:{49+2*t}], v16, s[34:35] sc1")
    a("s_waitcnt vmcnt(0)")
    a("s_branch L_poll2")
    a.label("L_poll2_done")
    stamp(10)
    for t in range(8):
        a("s_mov_b32 s28, 0")
        a.label(f"L_ypoll{t}")
        a(f"ds_read_b32 v17, v9 offset:{t*1024}")
        a("s_add_u32 s28, s28, 1")
        a("s_waitcnt lgkmcnt(0)")
        a("v_cmp_ne_u32 vcc, 1, v17")
        poll_guard("s28", "0x400000", f"L_ygo{t}")
        a(f"s_cbranch_vccz L_ygo{t}")
        a("s_sleep 1")
        a(f"s_branch L_ypoll{t}")
        a.label(f"L_ygo{t}")
        yo = t * 4096
        a(f"ds_read_b32 v28, v12 offset:{yo}")
        a(f"ds_read_b32 v29, v12 offset:{yo+1024}")
        a(f"ds_read_b32 v30, v12 offset:{yo+2048}")
        a(f"ds_read_b32 v31, v12 offset:{yo+3072}")
        xo = (7 - t) * 512
        a(f"ds_read_u16_d16_hi v20, v14 offset:{xo}")
        a(f"ds_read_u16_d16_hi v21, v14 offset:{xo+XUNIT}")
        a(f"ds_read_u16_d16_hi v22, v14 offset:{xo+2*XUNIT}")
        a(f"ds_read_u16_d16_hi v23, v14 offset:{xo+3*XUNIT}")
        a(f"v_add_u32 v18, {t*256*1024}, v15")
        a(f"v_sub_f32 v33, 1.0, v{48+2*t}")
        a("v_cvt_pk_bf16_f32 v42, v33, v33")
        a("v_and_b32 v33, 0xffff0000, v42")
        a("s_waitcnt lgkmcnt(4)")
        round_pair(a, 28, 28, 40)
        round_pair(a, 30, 30, 41)
        a("s_waitcnt lgkmcnt(0)")
        a("v_mul_f32 v34, v20, v24")
        a("v_mul_f32 v35, v21, v25")
        a("v_mul_f32 v36, v22, v26")
        a("v_mul_f32 v37, v23, v27")
        round_pair(a, 34, 34, 40)
        round_pair(a, 36, 36, 41)
        a("v_add_f32 v28, v28, v34")
        a("v_add_f32 v29, v29, v35")
        a("v_add_f32 v30, v30, v36")
        a("v_add_f32 v31, v31, v37")
        round_pair(a, 28, 28, 40)
        round_pair(a, 30, 30, 41)
        a("v_mul_f32 v28, v28, v22")
        a("v_mul_f32 v29, v29, v23")
        a("v_mul_f32 v30, v30, v33")
        a("v_mul_f32 v31, v31, v33")
        round_pair(a, 28, 28, 40)
        round_pair(a, 30, 30, 41)
        a(f"v_mul_f32 v28, v28, v{48+2*t}")
        a(f"v_mul_f32 v29, v29, v{48+2*t}")
        round_pair(a, 28, 28, 40)
        a("v_add_f32 v28, v28, v30")
        a("v_add_f32 v29, v29, v31")
        a("v_cvt_pk_bf16_f32 v19, v28, v29")
        a("global_store_dword v18, v19, s[36:37]")
        if t == 3:
            stamp(11)
    if st:
        a("s_waitcnt vmcnt(0)")
    stamp(12)
    a.label("L_fin")
    if st:
        n = 13
        a("s_waitcnt lgkmcnt(0)")
        a("s_lshl_b32 s58, s2, 3")
        a("s_add_u32 s58, s58, s14")
        a("s_lshl_b32 s58, s58, 6")
        a(f"s_add_u32 s58, s58, {STAMP_OFF}")
        a("v_mov_b32 v1, s58")
        a("s_mov_b64 exec, 1")
        for i in range(n):
            a(f"v_mov_b32 v2, s{76+2*i}")
            a(f"global_store_dword v1, v2, s[34:35] offset:{4*i}")
        a("s_mov_b64 exec, -1")
    a.label("L_end")
    a("s_endpgm")
    return kernel_wrap(name, a.text(), vgpr=256)


def full_source(**kw):
    hdr = open("gated_mix__ssm_conv_h3__ssm_conv_s4__prompt.s.ref").read().split("; @launch")[0]
    src = hdr + f"; @launch grid=(256,1,1) block=(512,1,1) lds={LDS_TOTAL}\n"
    src += '.amdgcn_target "amdgcn-amd-amdhsa--gfx950"\n'
    src += gen_fused(KN, **kw)
    return src


if __name__ == "__main__":
    out = sys.argv[1]
    kw = {}
    for x in sys.argv[2:]:
        k, v = x.split("=")
        kw[k] = {"0": False, "1": True}.get(v, v)
    open(out, "w").write(full_source(**kw))
```

```python
import sys
from gen import Asm, vr, sr, kernel_wrap, KA, KN, XKV_OFF, XQ_OFF, G_OFF, KCOPY, KUNIT, XUNIT, round_pair, stage_chunk_write
from gen_prep import fbits, zpow, dpp_reduce, L2E_HI, L2E_LO, LN2, TABROW, TABCH
from sched import Stream, order_v3

KBASE = 0
TBASE = 2 * KUNIT
R2 = 4 * KUNIT
XBASE = R2
YBASE = XBASE + 4 * XUNIT
FBASE = YBASE + 32768
TAB = R2
KTAB = TAB + 2 * TABCH
NBASE = KTAB + 2 * 1536
LDS_TOTAL = NBASE + 64
STAMP_OFF = 16 << 20
FL_OFF = 7 << 20


def gen_fused(name, st=0, scx="sc1", scl="sc1", stream_kw=None, pf=False, pfwave=7, diag=False):
    a = Asm()
    st = int(st)
    if diag: st = 1

    def stamp(i):
        if st == 1 or (st > 1 and (st >> (i + 1)) & 1):
            a(f"s_memrealtime s[{76+2*i}:{77+2*i}]")

    def cmul2(d, x, y, ny):
        a(f"v_mul_f32 {vr(d)}, {vr(x)}, {vr(y)}")
        a(f"v_mul_f32 {vr(d+1)}, {vr(x)}, {vr(y+1)}")
        a(f"v_fmac_f32 {vr(d)}, {vr(x+1)}, {vr(ny)}")
        a(f"v_fmac_f32 {vr(d+1)}, {vr(x+1)}, {vr(y)}")

    def neg(d, s):
        a(f"v_xor_b32 {vr(d)}, 0x80000000, {vr(s)}")

    def wr_u(addr, x, row, t):
        a(f"v_cvt_pk_f16_f32 {vr(t)}, {vr(x)}, -{vr(x+1)}")
        a(f"ds_write_b32 {vr(addr)}, {vr(t)} offset:{row*TABROW}")

    def wr_v(addr, x, r, t):
        a(f"v_cvt_pk_f16_f32 {vr(t)}, {vr(x)}, {vr(x+1)}")
        a(f"ds_write_b32 {vr(addr)}, {vr(t)} offset:{(48+r)*TABROW}")

    def front_fix(vD, vT, vLds):
        for j in range(16):
            a(f"v_mov_b32 {vr(vT+j)}, 0")
        a(f"v_subrev_u32 {vr(vT+16)}, 32, {vr(vLds)}")
        a(f"v_lshlrev_b32 {vr(vT+7)}, 16, {vr(vD)}")
        a(f"v_mov_b32 {vr(vT+11)}, {vr(vD)}")
        a(f"v_lshlrev_b32 {vr(vT+14)}, 16, {vr(vD)}")
        a(f"v_alignbit_b32 {vr(vT+15)}, {vr(vD+1)}, {vr(vD)}, 16")
        for c in range(4):
            a(f"ds_write_b128 {vr(vT+16)}, {vr(vT,4)} offset:{c*KCOPY}")
        for c in range(4):
            a(f"ds_write_b128 {vr(vT+16)}, {vr(vT+4*c,4)} offset:{c*KCOPY+16}")

    def poll_guard(cnt_reg, lim, done):
        a(f"s_cmp_gt_u32 {cnt_reg}, {lim}")
        a(f"s_cbranch_scc1 {done}")

    def gather_addr():
        a("v_and_b32 v206, 255, v0")
        a("v_lshlrev_b32 v206, 3, v206")
        a("v_lshrrev_b32 v207, 8, v0")
        a(f"v_mul_u32_u24 v207, 1536, v207")
        a(f"v_add_u32 v207, {KTAB}, v207")
        a("v_mov_b32 v208, 127")
        for e in range(0, 12, 2):
            a(f"v_add_u32 v209, {e}, v206")
            a(f"v_add_u32 v210, {e+1}, v206")
            a("v_cvt_f32_u32 v211, v209")
            a("v_cvt_f32_u32 v212, v210")
            a("v_cvt_pk_bf16_f32 v211, v211, v212")
            a("v_and_b32 v212, 0xffff, v211")
            a("v_lshrrev_b32 v211, 16, v211")
            a("v_subrev_u32 v212, 17024, v212")
            a("v_subrev_u32 v211, 17024, v211")
            a("v_med3_i32 v212, v209, v208, v212")
            a("v_med3_i32 v211, v210, v208, v211")
            a(f"v_lshl_add_u32 v{140+e}, v212, 1, v207")
            a(f"v_lshl_add_u32 v{141+e}, v211, 1, v207")
        a("v_lshrrev_b32 v210, 8, v0")
        a(f"v_mul_u32_u24 v210, {KUNIT}, v210")
        a("v_and_b32 v211, 255, v0")
        a("v_lshl_add_u32 v210, v211, 4, v210")
        a(f"v_add_u32 v52, {KBASE+32+2*KUNIT}, v210")

    stamp(0)
    a("s_cmp_ge_u32 s2, 256")
    a("s_cbranch_scc1 L_end")
    a("s_load_dwordx8 s[4:11], s[0:1], 0")
    a("s_load_dwordx4 s[40:43], s[0:1], 32")
    a("s_load_dwordx16 s[16:31], s[0:1], 56")
    a("s_load_dwordx2 s[32:33], s[0:1], 120")
    a("s_load_dwordx4 s[36:39], s[0:1], 128")
    a("s_load_dwordx2 s[34:35], s[0:1], 144")
    a("v_lshrrev_b32 v1, 6, v0")
    a("v_and_b32 v2, 63, v0")
    a("v_readfirstlane_b32 s14, v1")
    a("s_and_b32 s12, s2, 7")
    a("s_lshr_b32 s13, s2, 3")
    a("s_lshl_b32 s15, s12, 5")
    a("s_add_u32 s15, s15, s13")
    a("s_lshl_b32 s66, s15, 2")
    a("v_lshlrev_b32 v53, 4, v2")
    if pf:
        a(f"s_cmp_lg_u32 s14, {pfwave}")
        a("s_cbranch_scc1 L_nopf")
        a("s_getpc_b64 s[98:99]")
        a.label("L_pc")
        a("v_lshlrev_b32 v200, 7, v2")
        a("v_mov_b32 v205, s99")
        a("v_add_u32 v201, 8192, v200")
        a("v_min_u32 v201, L_end-L_pc, v201")
        a("v_add_co_u32 v202, vcc, s98, v200")
        a("v_addc_co_u32 v203, vcc, 0, v205, vcc")
        a("v_add_co_u32 v204, vcc, s98, v201")
        a("v_addc_co_u32 v205, vcc, 0, v205, vcc")
        a("global_load_dword v206, v[202:203], off")
        a("global_load_dword v207, v[204:205], off")
        a.label("L_nopf")
    a("s_cmp_lt_u32 s14, 4")
    a("s_cbranch_scc1 L_Tfront")
    a("s_lshl_b32 s60, s12, 7")
    a("s_lshl_b32 s61, s13, 16")
    a("s_add_u32 s62, s60, s61")
    a("v_bfe_u32 v3, v0, 4, 4")
    a("v_and_b32 v54, 15, v0")
    a("v_lshlrev_b32 v55, 12, v3")
    a("v_lshlrev_b32 v56, 3, v54")
    a("v_add3_u32 v55, v55, v56, s62")
    a("v_subrev_u32 v56, 1024, v55")
    a("v_subrev_u32 v57, 2048, v55")
    a("v_subrev_u32 v58, 3072, v55")
    a("v_lshlrev_b32 v59, 5, v54")
    a("s_lshl_b32 s63, s12, 9")
    a("v_add_u32 v59, s63, v59")
    a("s_waitcnt lgkmcnt(0)")
    stamp(1)
    for (srd, p) in ((44, 4), (48, 6), (52, 8)):
        a(f"s_mov_b32 s{srd}, s{p}")
        a(f"s_mov_b32 s{srd+1}, s{p+1}")
        a(f"s_mov_b32 s{srd+2}, {2<<20}")
        a(f"s_mov_b32 s{srd+3}, 0x20000")
    a("buffer_load_dwordx2 v[12:13], v58, s[48:51], 0 offen")
    a("buffer_load_dwordx2 v[14:15], v57, s[48:51], 0 offen")
    a("buffer_load_dwordx2 v[16:17], v56, s[48:51], 0 offen")
    for j in range(4):
        a(f"buffer_load_dwordx2 v[{18+2*j}:{19+2*j}], v55, s[48:51], 0 offen offset:{1024*j}")
    a("global_load_dwordx4 v[34:37], v59, s[10:11]")
    a("global_load_dwordx4 v[38:41], v59, s[10:11] offset:16")
    for j in range(4):
        a(f"buffer_load_dwordx2 v[{26+2*j}:{27+2*j}], v55, s[52:55], 0 offen offset:{1024*j}")
    for j in range(4):
        a(f"buffer_load_dwordx2 v[{4+2*j}:{5+2*j}], v55, s[44:47], 0 offen offset:{1024*j}")
    a("s_load_dword s68, s[42:43], s66")
    a("s_load_dword s69, s[30:31], s66")
    a("v_lshlrev_b32 v60, 1, v3")
    a("v_sub_u32 v60, 30, v60")
    a("v_lshrrev_b32 v61, 2, v60")
    a("v_and_b32 v62, 7, v54")
    a("v_xor_b32 v61, v61, v62")
    a("v_lshlrev_b32 v61, 4, v61")
    a("v_and_b32 v60, 3, v60")
    a("v_lshl_add_u32 v61, v60, 2, v61")
    a("v_lshl_add_u32 v42, v54, 9, v61")
    a(f"v_add_u32 v42, {TBASE}, v42")
    a("v_bfe_u32 v60, v0, 3, 5")
    a("v_and_b32 v61, 7, v0")
    a("v_lshrrev_b32 v62, 2, v60")
    a("v_xor_b32 v62, v61, v62")
    a("v_lshlrev_b32 v62, 4, v62")
    a("v_lshl_add_u32 v43, v60, 7, v62")
    a(f"v_add_u32 v43, {TBASE}, v43")
    a("v_lshlrev_b32 v60, 12, v60")
    a("v_lshl_add_u32 v44, v61, 4, v60")
    a("s_lshl_b32 s61, s12, 18")
    a("s_lshl_b32 s3, s13, 7")
    a("s_sub_u32 s61, s61, s3")
    a("s_add_u32 s61, s61, 3968")
    a("v_add_u32 v44, s61, v44")
    a("v_add_u32 v45, 0x20000, v44")
    a(f"s_add_u32 s70, s34, {XKV_OFF}")
    a("s_addc_u32 s71, s35, 0")
    a(f"s_add_u32 s72, s34, {XQ_OFF}")
    a("s_addc_u32 s73, s35, 0")
    a("s_lshl_b32 s61, s15, 13")
    a("s_add_u32 s56, s40, s61")
    a("s_addc_u32 s57, s41, 0")
    a("s_mov_b32 s58, 8192")
    a("s_mov_b32 s59, 0x20000")
    a("v_and_b32 v46, 255, v0")
    a("v_lshlrev_b32 v46, 4, v46")
    a("v_add_u32 v47, 4096, v46")
    a(f"v_add_u32 v48, {KBASE+32}, v46")
    a(f"v_add_u32 v49, {KUNIT}, v48")
    gather_addr()
    a("s_mov_b32 s62, 0x05040100")
    a("s_mov_b32 s63, 0x07060302")
    KU, W, AC, VU = 60, 88, 104, 120
    a("s_waitcnt vmcnt(10)")
    for row in range(7):
        for e in range(2):
            src = 12 + 2 * row + e
            a(f"v_lshlrev_b32 v{KU+4*row+2*e}, 16, v{src}")
            a(f"v_and_b32 v{KU+4*row+2*e+1}, 0xffff0000, v{src}")
    a("s_waitcnt vmcnt(8)")
    for e in range(2):
        s0, s1, s2_, s3 = 34 + 4 * e, 35 + 4 * e, 36 + 4 * e, 37 + 4 * e
        a(f"v_lshlrev_b32 v{W+0+2*e}, 16, v{s0}")
        a(f"v_lshlrev_b32 v{W+0+2*e+1}, 16, v{s2_}")
        a(f"v_and_b32 v{W+4+2*e}, 0xffff0000, v{s0}")
        a(f"v_and_b32 v{W+4+2*e+1}, 0xffff0000, v{s2_}")
        a(f"v_lshlrev_b32 v{W+8+2*e}, 16, v{s1}")
        a(f"v_lshlrev_b32 v{W+8+2*e+1}, 16, v{s3}")
        a(f"v_and_b32 v{W+12+2*e}, 0xffff0000, v{s1}")
        a(f"v_and_b32 v{W+12+2*e+1}, 0xffff0000, v{s3}")
    chains = [(row, e) for row in range(4) for e in range(2)]
    def acc(row, e): return AC + 4 * row + 2 * e
    for (row, e) in chains:
        a(f"v_pk_mul_f32 {vr(acc(row,e),2)}, {vr(KU+4*(row+0)+2*e,2)}, {vr(W+12+2*e,2)}")
    for j in (2, 1, 0):
        for (row, e) in chains:
            a(f"v_pk_fma_f32 {vr(acc(row,e),2)}, {vr(KU+4*(row+3-j)+2*e,2)}, {vr(W+4*j+2*e,2)}, {vr(acc(row,e),2)}")
    a("s_waitcnt vmcnt(4)")
    stamp(2)
    for row in range(4):
        for e in range(2):
            src = 26 + 2 * row + e
            a(f"v_lshlrev_b32 v{VU+4*row+2*e}, 16, v{src}")
            a(f"v_and_b32 v{VU+4*row+2*e+1}, 0xffff0000, v{src}")
    for (row, e) in chains:
        a(f"v_pk_mul_f32 {vr(acc(row,e),2)}, {vr(acc(row,e),2)}, {vr(VU+4*row+2*e,2)}")
    for j in range(4):
        e, x = j >> 1, j & 1
        a(f"v_cvt_pk_bf16_f32 v{60+2*j}, v{acc(3,e)+x}, v{acc(2,e)+x}")
        a(f"v_cvt_pk_bf16_f32 v{61+2*j}, v{acc(1,e)+x}, v{acc(0,e)+x}")
    for j in range(4):
        a(f"ds_write_b64 v42, v[{60+2*j}:{61+2*j}] offset:{j*128}")
    a("s_waitcnt vmcnt(0)")
    for j in range(4):
        e, x = j >> 1, j & 1
        a(f"v_perm_b32 v{68+2*j}, v{4+2*2+e}, v{4+2*3+e}, s{62+x}")
        a(f"v_perm_b32 v{69+2*j}, v{4+2*0+e}, v{4+2*1+e}, s{62+x}")
    for j in range(4):
        a(f"ds_write_b64 v42, v[{68+2*j}:{69+2*j}] offset:{8192 + j*128}")
    a("s_waitcnt lgkmcnt(0)")
    a("s_barrier")
    stamp(3)
    a("ds_read_b128 v[112:115], v43")
    a("ds_read_b128 v[116:119], v43 offset:8192")
    a("ds_read_b128 v[120:123], v43 offset:4096")
    a("ds_read_b128 v[124:127], v43 offset:12288")
    a("buffer_load_dwordx4 v[20:23], v46, s[56:59], 0 offen")
    a("buffer_load_dwordx2 v[24:25], v46, s[56:59], 0 offen offset:16")
    a("buffer_load_dwordx4 v[32:35], v47, s[56:59], 0 offen")
    a("buffer_load_dwordx2 v[36:37], v47, s[56:59], 0 offen offset:16")
    a("s_waitcnt lgkmcnt(3)")
    a(f"global_store_dwordx4 v44, v[112:115], s[70:71] {scx}")
    a("s_waitcnt lgkmcnt(2)")
    a(f"global_store_dwordx4 v44, v[116:119], s[72:73] {scx}")
    a("s_waitcnt lgkmcnt(1)")
    a(f"global_store_dwordx4 v45, v[120:123], s[70:71] {scx}")
    a("s_waitcnt lgkmcnt(0)")
    a(f"global_store_dwordx4 v45, v[124:127], s[72:73] {scx}")
    stamp(4)
    a("s_branch L_front_done")

    a.label("L_Tfront")
    a("s_and_b32 s64, s14, 1")
    a("s_lshr_b32 s65, s14, 1")
    for j in range(40, 50):
        a(f"v_mov_b32 v{j}, 0")
    a("s_lshl_b32 s61, s15, 1")
    a("s_add_u32 s61, s61, s64")
    a("s_lshl_b32 s61, s61, 8")
    a("s_lshl_b32 s3, s65, 7")
    a("v_lshlrev_b32 v68, 1, v2")
    a("v_add_u32 v69, s61, v68")
    a("v_add_u32 v68, s3, v69")
    a("v_xor_b32 v69, 128, v68")
    a("s_lshl_b32 s60, s2, 3")
    a("s_lshl_b32 s3, s14, 1")
    a("s_add_u32 s60, s60, s3")
    a("s_lshl_b32 s3, s60, 10")
    a("v_add_u32 v54, s3, v53")
    a("s_waitcnt lgkmcnt(0)")
    stamp(1)
    a("s_load_dword s67, s[28:29], s66")
    for j, p in enumerate((16, 18, 20, 22, 24, 26)):
        a(f"global_load_short_d16_hi v{40+j}, v68, s[{p}:{p+1}]")
    for j, p in enumerate((20, 22, 24, 26)):
        a(f"global_load_short_d16_hi v{46+j}, v69, s[{p}:{p+1}]")
    a("s_or_b32 s3, s2, s14")
    a("s_cmp_lg_u32 s3, 0")
    a("s_cbranch_scc1 L_nononce")
    a("s_memrealtime s[56:57]")
    a("v_mov_b32 v136, 0")
    a("s_waitcnt lgkmcnt(0)")
    a("s_or_b32 s56, s56, 1")
    a("v_mov_b32 v137, s56")
    a("s_mov_b64 exec, 1")
    a("global_store_dword v136, v137, s[38:39] sc1")
    a("s_mov_b64 exec, -1")
    a.label("L_nononce")
    gather_addr()
    a("s_waitcnt vmcnt(0) lgkmcnt(0)")
    stamp(2)
    a("global_load_dwordx4 v[4:7], v54, s[4:5]")
    a("global_load_dwordx4 v[8:11], v54, s[4:5] offset:1024")
    a("global_load_dwordx4 v[12:15], v53, s[32:33]")
    a("s_lshl_b32 s3, s67, 16")
    a("s_and_b32 s61, s67, 0xffff0000")
    a("s_cmp_eq_u32 s64, 0")
    a("s_cselect_b32 s3, s3, s61")
    a("v_mov_b32 v60, s3")
    a(f"v_mul_f32 v61, 0x{L2E_HI:08x}, v60")
    a(f"s_mov_b32 s61, 0x{L2E_HI:08x}")
    a("v_fma_f32 v62, v60, s61, -v61")
    a(f"v_mov_b32 v63, 0x{L2E_LO:08x}")
    a("v_fmac_f32 v62, v60, v63")
    a("v_exp_f32 v61, v61")
    a(f"v_mul_f32 v62, 0x{LN2:08x}, v62")
    a("v_fma_f32 v61, v61, v62, v61")
    a("v_cvt_pk_bf16_f32 v61, v61, v61")
    a("v_and_b32 v61, 0xffff0000, v61")
    a("v_mul_f32 v62, v61, v40")
    a("v_mul_f32 v63, v61, v41")
    a(f"v_mul_f32 v62, 0x{L2E_HI:08x}, v62")
    a("v_mul_f32 v63, 0.15915494, v63")
    for (dst, b, cc) in ((64, 42, 44), (66, 46, 48)):
        a(f"v_mul_f32 v68, v61, v{b}")
        a(f"v_mul_f32 v69, v61, v{b+1}")
        neg(70, 69)
        cmul2(dst, cc, 68, 70)
    a("v_max_f32 v68, |v64|, |v65|")
    a("v_max3_f32 v68, |v66|, |v67|, v68")
    zpow(a, 74, 75, 62, 63, 128, 70, 71)
    dpp_reduce(a, "v_max_f32", 68)
    neg(76, 75)
    a("v_readlane_b32 s74, v68, 63")
    a(f"s_mul_i32 s75, s64, {TABCH}")
    a(f"s_max_u32 s74, s74, {fbits(1e-30)}")
    a("v_mov_b32 v68, s74")
    a("v_rcp_f32 v69, v68")
    a(f"s_add_u32 s75, s75, {TAB}")
    a("s_lshl_b32 s3, s65, 8")
    a("s_add_u32 s3, s3, s75")
    a("v_mul_f32 v64, v64, v69")
    a("v_mul_f32 v65, v65, v69")
    a("v_lshlrev_b32 v72, 2, v2")
    a("v_add_u32 v72, s3, v72")
    a("s_lshl_b32 s3, s64, 2")
    a(f"s_add_u32 s3, s3, {NBASE+4}")
    a("v_mov_b32 v69, s3")
    a("ds_write_b32 v69, v68")
    grow = {0: 0, 1: 8, 2: 16, 3: 20, 4: 24, 5: 26, 6: 28, 7: 30}
    for h in range(8, 17):
        grow[h] = 32 + h - 8
    zpow(a, 78, 79, 62, 63, 8, 70, 71)
    neg(80, 79)
    ZB = 100
    def Z(d): return ZB + 4 * (d - 1)
    zpow(a, Z(1), Z(1) + 1, 62, 63, 1, 70, 71)
    neg(Z(1) + 2, Z(1) + 1)
    for (d, x, y) in ((2, 1, 1), (3, 2, 1), (4, 2, 2), (5, 4, 1), (6, 4, 2), (7, 4, 3)):
        cmul2(Z(d), Z(x), Z(y), Z(y) + 2)
        neg(Z(d) + 2, Z(d) + 1)
    a("v_mov_b32 v82, 1.0")
    a("v_mov_b32 v83, 0")
    wr_v(72, 82, 0, 73)
    wr_v(72, 78, 1, 77)
    cv, cg = 78, 64
    tog = 0
    for h in range(0, 17):
        if h > 0:
            ng = 86 if cg != 86 else 88
            cmul2(ng, cg, 74, 76)
            cg = ng
        if 1 <= h <= 14:
            nv = 82 if cv != 82 else 84
            cmul2(nv, cv, 78, 80)
            cv = nv
        wr_u(72, cg, grow[h], 73)
        if 1 <= h <= 14:
            wr_v(72, cv, h + 1, 77)
        if h < 2:
            ds = [(d, grow[h] + d) for d in range(1, 8)]
        elif h < 4:
            ds = [(2, grow[h] + 1), (4, grow[h] + 2), (6, grow[h] + 3)]
        elif h < 8:
            ds = [(4, grow[h] + 1)]
        else:
            ds = []
        for (d, row) in ds:
            dst = 90 + 2 * tog
            cmul2(dst, cg, Z(d), Z(d) + 2)
            wr_u(72, dst, row, 94 + tog)
            tog ^= 1
        if h == 8:
            a("v_mov_b32 v136, 0")
            a("global_load_dword v137, v136, s[38:39] sc1") if False else None
    a("s_cmp_lg_u32 s14, 1")
    a("s_cbranch_scc1 L_nn1")
    a("v_mov_b32 v136, 0")
    a("global_load_dword v137, v136, s[38:39] sc1")
    a.label("L_nn1")
    stamp(3)
    a("s_waitcnt lgkmcnt(0)")
    a("s_barrier")
    stamp(4)

    a.label("L_front_done")
    a(f"v_mov_b32 v135, {NBASE}")
    a("ds_read_b96 v[132:134], v135")
    a("s_cmp_ge_u32 s14, 6")
    a("s_cbranch_scc1 L_jobdone")
    a("s_and_b32 s64, s14, 1")
    a("s_lshr_b32 s3, s14, 1")
    a(f"s_mul_i32 s75, s64, {TABCH}")
    a(f"s_add_u32 s75, s75, {TAB}")
    a("v_and_b32 v60, 15, v2")
    a("v_lshrrev_b32 v61, 4, v2")
    a(f"v_mul_u32_u24 v62, {TABROW}, v60")
    a("v_lshl_add_u32 v62, v61, 4, v62")
    a("v_add_u32 v62, s75, v62")
    a(f"s_mul_i32 s61, s3, {16*TABROW}")
    a("v_add_u32 v63, s61, v62")
    for kk in range(8):
        a(f"ds_read_b128 {vr(80+4*kk,4)}, v63 offset:{64*kk}")
        a(f"ds_read_b128 {vr(168+4*kk,4)}, v62 offset:{48*TABROW + 64*kk}")
    for kk in range(8):
        a(f"s_waitcnt lgkmcnt({14-2*kk})")
        if kk == 0:
            a("v_readfirstlane_b32 s74, v133")
            a("v_readfirstlane_b32 s75, v134")
        srcc = "0" if kk == 0 else "v[64:67]"
        a(f"v_mfma_f32_16x16x32_f16 v[64:67], {vr(80+4*kk,4)}, {vr(168+4*kk,4)}, {srcc}")
    a("s_cmp_eq_u32 s64, 0")
    a("s_cselect_b32 s74, s74, s75")
    a("s_mul_i32 s61, s64, 1536")
    a(f"s_add_u32 s61, s61, {KTAB}")
    a("s_nop 5")
    for r in range(4):
        a(f"v_mul_f32 v{64+r}, s74, v{64+r}")
    a("v_cvt_pk_bf16_f32 v68, v64, v65")
    a("v_cvt_pk_bf16_f32 v69, v66, v67")
    a("s_cmp_eq_u32 s3, 1")
    a("s_cbranch_scc1 L_job1")
    a("s_cmp_eq_u32 s3, 2")
    a("s_cbranch_scc1 L_job2")
    a("v_lshrrev_b32 v70, 1, v61")
    a("v_lshlrev_b32 v70, 8, v70")
    a("v_lshl_add_u32 v70, v60, 4, v70")
    a("v_and_b32 v71, 1, v61")
    a("v_lshl_add_u32 v70, v71, 3, v70")
    a("v_add_u32 v70, s61, v70")
    a("ds_write_b64 v70, v[68:69]")
    a("s_branch L_jobdone")
    a.label("L_job1")
    a("v_lshlrev_b32 v70, 7, v61")
    a("v_lshl_add_u32 v71, v60, 3, v70")
    a("v_lshl_add_u32 v72, v60, 2, v70")
    a("v_cmp_gt_u32 vcc, 2, v61")
    a("v_mov_b32 v73, 64")
    a("s_nop 1")
    a("v_cndmask_b32 v70, v72, v71, vcc")
    a("v_cndmask_b32 v73, v73, 4, vcc")
    a("v_add_u32 v70, s61, v70")
    a("v_add_u32 v73, v70, v73")
    a("ds_write_b32 v70, v68 offset:512")
    a("ds_write_b32 v73, v69 offset:512")
    a("s_branch L_jobdone")
    a.label("L_job2")
    a("v_lshlrev_b32 v70, 7, v61")
    a("v_lshl_add_u32 v70, v60, 1, v70")
    a("v_add_u32 v70, s61, v70")
    a("ds_write_b16 v70, v68 offset:1024")
    a("ds_write_b16_d16_hi v70, v68 offset:1056")
    a("ds_write_b16 v70, v69 offset:1088")
    a("ds_write_b16_d16_hi v70, v69 offset:1120")
    a.label("L_jobdone")
    a("s_waitcnt lgkmcnt(0)")
    a("s_barrier")
    stamp(5)
    for e in range(0, 12, 2):
        a(f"ds_read_u16 v{60+e//2}, v{140+e}")
        a(f"ds_read_u16_d16_hi v{68+e//2}, v{141+e}")
    a("s_and_b32 s20, s14, 3")
    a(f"s_mul_i32 s21, s20, {XUNIT}")
    a(f"s_add_u32 s21, s21, {XBASE}")
    a("s_and_b32 s3, s20, 1")
    a("s_lshl_b32 s61, s15, 1")
    a("s_add_u32 s61, s61, s3")
    a("s_lshl_b32 s61, s61, 12")
    a("s_lshr_b32 s3, s20, 1")
    a("s_cmp_eq_u32 s3, 0")
    a(f"s_cselect_b32 s3, {XKV_OFF}, {XQ_OFF}")
    a("s_add_u32 s61, s61, s3")
    a("s_lshr_b32 s3, s14, 2")
    a("s_lshl_b32 s3, s3, 11")
    a("s_add_u32 s61, s61, s3")
    a("s_add_u32 s22, s34, s61")
    a("s_addc_u32 s23, s35, 0")
    a("s_add_u32 s24, s21, s3")
    a("s_waitcnt lgkmcnt(0)")
    for e in range(6):
        a(f"v_and_b32 v{68+e}, 0xffff0000, v{68+e}")
        a(f"v_or_b32 v{60+e}, v{60+e}, v{68+e}")
    stage_chunk_write(a, 60, 80, 52)
    a("s_cmp_lg_u32 s20, 0")
    a("s_cbranch_scc1 L_nofront2")
    a("s_mov_b64 exec, 1")
    front_fix(60, 92, 52)
    a("s_mov_b64 exec, -1")
    a.label("L_nofront2")
    a("s_cmp_lt_u32 s14, 4")
    a("s_cbranch_scc1 L_Tmid")
    a("s_waitcnt vmcnt(6)")
    stage_chunk_write(a, 20, 112, 48)
    a("s_waitcnt vmcnt(4)")
    stage_chunk_write(a, 32, 124, 49)
    a("s_cmp_lg_u32 s14, 4")
    a("s_cbranch_scc1 L_nofront1")
    a("s_mov_b64 exec, 1")
    front_fix(20, 152, 48)
    front_fix(32, 172, 49)
    a("s_mov_b64 exec, -1")
    a.label("L_nofront1")
    a("s_sub_u32 s26, s14, 4")
    a("v_lshlrev_b32 v67, 8, v2")
    a(f"v_add_u32 v67, {FBASE}, v67")
    a("v_mov_b32 v72, 0")
    a("s_mov_b32 exec_hi, 0")
    a("ds_write_b32 v67, v72")
    a("s_mov_b64 exec, -1")
    a("s_lshl_b32 s3, s26, 6")
    a("v_add_u32 v10, s3, v2")
    a("v_lshrrev_b32 v11, 4, v10")
    a("v_bfe_u32 v12, v10, 2, 2")
    a("v_lshlrev_b32 v13, 1, v12")
    a("v_xor_b32 v11, v11, v13")
    a("v_lshlrev_b32 v11, 4, v11")
    a("v_lshl_add_u32 v11, v12, 8, v11")
    a("v_and_b32 v12, 3, v10")
    a("v_lshl_add_u32 v11, v12, 2, v11")
    a(f"v_add_u32 v12, {YBASE}, v11")
    a("v_lshlrev_b32 v13, 3, v10")
    a(f"v_add_u32 v13, {G_OFF}, v13")
    a("v_lshlrev_b32 v14, 1, v10")
    a(f"v_sub_u32 v14, {XBASE + 4094 - 3584}, v14")
    a("v_lshlrev_b32 v15, 10, v10")
    a("s_lshl_b32 s3, s15, 2")
    a("v_add_u32 v15, s3, v15")
    a("v_and_b32 v9, 3, v2")
    a("v_lshlrev_b32 v9, 8, v9")
    a(f"v_add_u32 v9, {FBASE}, v9")
    a("v_add_u32 v1, s24, v53")
    a("v_mov_b32 v7, v53")
    stamp(6)
    a("s_waitcnt vmcnt(0) lgkmcnt(0)")
    a("s_branch L_mid_done")
    a.label("L_Tmid")
    a("s_waitcnt vmcnt(0)")
    for e in range(4):
        a(f"v_lshlrev_b32 v{60+2*e}, 16, v{12+e}")
        a(f"v_and_b32 v{61+2*e}, 0xffff0000, v{12+e}")
    for rr in range(2):
        B = 68 + 8 * rr
        for e in range(4):
            a(f"v_lshlrev_b32 v{B+2*e}, 16, v{4+4*rr+e}")
            a(f"v_and_b32 v{B+2*e+1}, 0xffff0000, v{4+4*rr+e}")
    for rr in range(2):
        B = 68 + 8 * rr
        for e in range(8):
            a(f"v_mul_f32 v{B+e}, v{B+e}, v{60+e}")
    for rr in range(2):
        B = 68 + 8 * rr
        for e in range(4):
            round_pair(a, B + 2 * e, B + 2 * e, 84 + e)
    for rr in range(2):
        B = 68 + 8 * rr
        for (x, y) in ((0, 1), (2, 3), (4, 5), (6, 7), (0, 2), (4, 6), (0, 4)):
            a(f"v_add_f32 v{B+x}, v{B+x}, v{B+y}")
    for sh in (1, 2, 4, 8):
        a("s_nop 0")
        for B in (68, 76):
            a(f"v_add_f32_dpp v{B}, v{B}, v{B} row_shr:{sh} row_mask:0xf bank_mask:0xf bound_ctrl:0")
    a("s_nop 0")
    for B in (68, 76):
        a(f"v_add_f32_dpp v{B}, v{B}, v{B} row_bcast:15 row_mask:0xa bank_mask:0xf")
    a("s_nop 0")
    for B in (68, 76):
        a(f"v_add_f32_dpp v{B}, v{B}, v{B} row_bcast:31 row_mask:0xc bank_mask:0xf")
    a("v_cvt_pk_bf16_f32 v68, v68, v76")
    a("v_and_b32 v76, 0xffff0000, v68")
    a("v_lshlrev_b32 v68, 16, v68")
    for B in (68, 76):
        a(f"v_mul_f32 v{B}, {fbits(-1.4426950408889634)}, v{B}")
    for B in (68, 76):
        a(f"v_exp_f32 v{B}, v{B}")
    a("s_nop 0")
    for B in (68, 76):
        a(f"v_add_f32 v{B}, 1.0, v{B}")
    for B in (68, 76):
        a(f"v_rcp_f32 v{B}, v{B}")
    a("s_nop 0")
    a("v_cvt_pk_bf16_f32 v68, v68, v76")
    a("v_and_b32 v18, 0xffff0000, v68")
    a("v_lshlrev_b32 v16, 16, v68")
    a("s_cmp_lg_u32 s14, 1")
    a("s_cbranch_scc1 L_nonce_done")
    a("v_mov_b32 v136, 0")
    a("s_mov_b32 s28, 0")
    a.label("L_nonce_poll")
    a("v_readfirstlane_b32 s3, v137")
    a("s_add_u32 s28, s28, 1")
    poll_guard("s28", "0x100000", "L_nonce_got")
    a("s_cmp_lg_u32 s3, 0")
    a("s_cbranch_scc1 L_nonce_got")
    a("global_load_dword v137, v136, s[38:39] sc1")
    a("s_waitcnt vmcnt(0)")
    a("s_branch L_nonce_poll")
    a.label("L_nonce_got")
    a(f"v_mov_b32 v136, {NBASE}")
    a("ds_write_b32 v136, v137")
    a.label("L_nonce_done")
    for j in range(4):
        a(f"v_mov_b32 v{72+j}, 0")
    a("v_add_u32 v67, s21, v53")
    a("s_mov_b32 exec_hi, 0")
    a("ds_write_b128 v67, v[72:75] offset:4096")
    a("s_mov_b64 exec, -1")
    a(f"s_mul_i32 s25, s20, {KUNIT}")
    a("v_and_b32 v31, 15, v2")
    a("v_lshrrev_b32 v32, 4, v2")
    a("v_add_u32 v33, 1, v31")
    a("v_and_b32 v34, 3, v33")
    a("v_lshrrev_b32 v33, 2, v33")
    a(f"v_mul_u32_u24 v34, {KCOPY}, v34")
    a("v_lshlrev_b32 v33, 3, v33")
    a("v_lshlrev_b32 v35, 4, v32")
    a("v_add3_u32 v34, v34, v33, v35")
    a("v_add_u32 v4, s25, v34")
    a("v_sub_u32 v33, 15, v31")
    a("v_lshlrev_b32 v33, 5, v33")
    a("v_add3_u32 v5, v33, v35, s21")
    a("v_lshlrev_b32 v33, 1, v32")
    a("v_xor_b32 v33, v31, v33")
    a("v_lshlrev_b32 v33, 4, v33")
    a("v_lshl_add_u32 v33, v32, 8, v33")
    a("s_lshl_b32 s3, s20, 10")
    a(f"s_add_u32 s3, s3, {YBASE}")
    a("v_add_u32 v6, s3, v33")
    a("s_lshl_b32 s3, s20, 8")
    a(f"s_add_u32 s3, s3, {FBASE}")
    a("v_lshlrev_b32 v3, 2, v2")
    a("v_add_u32 v3, s3, v3")
    a("v_add_u32 v1, s24, v53")
    a("v_mov_b32 v7, v53")
    a("v_mov_b32 v0, 1")
    stamp(6)
    a("s_waitcnt lgkmcnt(0)")
    a.label("L_mid_done")
    a(f"v_mov_b32 v136, {NBASE}")
    a("s_barrier")
    stamp(7)
    a("ds_read_b32 v132, v136")
    a("s_cmp_ge_u32 s14, 4")
    a("s_cbranch_scc1 L_helper_go")
    kw = dict(credit_per_slot=3.5, horizon=80, safe_slots=12)
    kw.update(stream_kw or {})
    strm = Stream(a, order_v3(steps3=((0,), (1,), (2,), (3,))), 4, 5, 6, frag_base=40, nslots=54, acc_base=8,
                  preload=[('A', m) for m in range(32)], vF=3, vOne=0, **kw)
    a("s_waitcnt lgkmcnt(0)")
    a("v_readfirstlane_b32 s27, v132")
    a("s_lshl_b32 s3, s60, 3")
    a(f"s_add_u32 s3, s3, {G_OFF}")
    a("v_mov_b32 v62, s3")
    a("v_mov_b32 v17, s27")
    a("v_mov_b32 v19, s27")
    a("s_mov_b32 exec_lo, 0")
    a("s_mov_b32 exec_hi, 0x80000000")
    a("global_store_dwordx2 v62, v[16:17], s[34:35] sc1")
    a("global_store_dwordx2 v62, v[18:19], s[34:35] offset:8 sc1")
    a("s_mov_b64 exec, -1")
    a("s_nop 1")
    strm.emit_preload()
    a("s_barrier")
    stamp(8)
    a(f"global_load_dwordx4 v[8:11], v7, s[22:23] {scl}")
    a(f"global_load_dwordx4 v[12:15], v7, s[22:23] offset:1024 {scl}")
    a("s_waitcnt vmcnt(1)")
    a("ds_write_b128 v1, v[8:11]")
    a("s_waitcnt vmcnt(0)")
    a("ds_write_b128 v1, v[12:15] offset:1024")
    a("s_waitcnt lgkmcnt(0)")
    a("s_barrier")
    stamp(9)
    info = strm.run()
    sys.stderr.write(f"stream: {info}\n")
    stamp(10)
    a("s_branch L_fin")

    a.label("L_helper_go")
    a("s_waitcnt lgkmcnt(0)")
    a("v_readfirstlane_b32 s27, v132")
    a("s_cmp_lg_u32 s14, 7")
    a("s_cbranch_scc1 L_nosig1")
    a("s_lshl_b32 s3, s2, 7")
    a(f"s_add_u32 s3, s3, {FL_OFF}")
    a("v_mov_b32 v134, s3")
    a("v_mov_b32 v136, s27")
    a("v_mov_b32 v137, 0")
    a("s_mov_b64 exec, 1")
    a("global_store_dwordx2 v134, v[136:137], s[34:35] sc1")
    a("s_mov_b64 exec, -1")
    a.label("L_nosig1")
    for j in range(20, 24):
        a(f"v_mov_b32 v{j}, 0")
    a("s_lshl_b32 s3, s68, 16")
    a("v_mov_b32 v24, s3")
    a("s_and_b32 s3, s68, 0xffff0000")
    a("v_mov_b32 v25, s3")
    a("s_lshl_b32 s3, s69, 16")
    a("v_mov_b32 v26, s3")
    a("s_and_b32 s3, s69, 0xffff0000")
    a("v_mov_b32 v27, s3")
    a("s_cmp_lg_u32 s14, 4")
    a("s_cbranch_scc1 L_gload")
    a("v_lshlrev_b32 v16, 10, v2")
    a("s_lshl_b32 s3, s12, 7")
    a(f"s_add_u32 s3, s3, {FL_OFF}")
    a("v_add_u32 v16, s3, v16")
    a("s_mov_b32 s28, 0")
    a("s_mov_b32 exec_hi, 0")
    a.label("L_poll1")
    a("global_load_dword v17, v16, s[34:35] sc1")
    a("s_add_u32 s28, s28, 1")
    a("s_waitcnt vmcnt(0)")
    a("v_cmp_ne_u32 vcc, s27, v17")
    poll_guard("s28", "0x100000", "L_poll1_done")
    a("s_cbranch_vccnz L_poll1")
    a.label("L_poll1_done")
    a("s_mov_b64 exec, -1")
    a.label("L_gload")
    a("s_barrier")
    stamp(8)
    a(f"global_load_dwordx4 v[40:43], v7, s[22:23] {scl}")
    a(f"global_load_dwordx4 v[44:47], v7, s[22:23] offset:1024 {scl}")
    for t in range(8):
        a(f"v_add_u32 v16, {t*2048}, v13")
        a(f"global_load_dwordx2 v[{48+2*t}:{49+2*t}], v16, s[34:35] sc1")
    a("s_waitcnt vmcnt(9)")
    a("ds_write_b128 v1, v[40:43]")
    a("s_waitcnt vmcnt(8)")
    a("ds_write_b128 v1, v[44:47] offset:1024")
    a("s_waitcnt lgkmcnt(0)")
    a("s_barrier")
    stamp(9)
    a("s_waitcnt vmcnt(0)")
    a("s_mov_b32 s28, 0")
    a.label("L_poll2")
    a("v_xor_b32 v17, s27, v49")
    for t in range(1, 8):
        a(f"v_xor_b32 v16, s27, v{49+2*t}")
        a("v_or_b32 v17, v17, v16")
    a("v_cmp_ne_u32 vcc, 0, v17")
    a("s_add_u32 s28, s28, 1")
    poll_guard("s28", "0x100000", "L_poll2_done")
    a("s_cbranch_vccz L_poll2_done")
    for t in range(8):
        a(f"v_add_u32 v16, {t*2048}, v13")
        a(f"global_load_dwordx2 v[{48+2*t}:{49+2*t}], v16, s[34:35] sc1")
    a("s_waitcnt vmcnt(0)")
    a("s_branch L_poll2")
    a.label("L_poll2_done")
    stamp(10)
    for t in range(8):
        a("s_mov_b32 s28, 0")
        a.label(f"L_ypoll{t}")
        a(f"ds_read_b32 v17, v9 offset:{t*1024}")
        a("s_add_u32 s28, s28, 1")
        a("s_waitcnt lgkmcnt(0)")
        a("v_cmp_ne_u32 vcc, 1, v17")
        poll_guard("s28", "0x400000", f"L_ygo{t}")
        a(f"s_cbranch_vccz L_ygo{t}")
        a("s_sleep 1")
        a(f"s_branch L_ypoll{t}")
        a.label(f"L_ygo{t}")
        yo = t * 4096
        a(f"ds_read_b32 v28, v12 offset:{yo}")
        a(f"ds_read_b32 v29, v12 offset:{yo+1024}")
        a(f"ds_read_b32 v30, v12 offset:{yo+2048}")
        a(f"ds_read_b32 v31, v12 offset:{yo+3072}")
        xo = (7 - t) * 512
        a(f"ds_read_u16_d16_hi v20, v14 offset:{xo}")
        a(f"ds_read_u16_d16_hi v21, v14 offset:{xo+XUNIT}")
        a(f"ds_read_u16_d16_hi v22, v14 offset:{xo+2*XUNIT}")
        a(f"ds_read_u16_d16_hi v23, v14 offset:{xo+3*XUNIT}")
        a(f"v_add_u32 v18, {t*256*1024}, v15")
        a(f"v_sub_f32 v33, 1.0, v{48+2*t}")
        a("v_cvt_pk_bf16_f32 v42, v33, v33")
        a("v_and_b32 v33, 0xffff0000, v42")
        a("s_waitcnt lgkmcnt(4)")
        round_pair(a, 28, 28, 40)
        round_pair(a, 30, 30, 41)
        a("s_waitcnt lgkmcnt(0)")
        a("v_mul_f32 v34, v20, v24")
        a("v_mul_f32 v35, v21, v25")
        a("v_mul_f32 v36, v22, v26")
        a("v_mul_f32 v37, v23, v27")
        round_pair(a, 34, 34, 40)
        round_pair(a, 36, 36, 41)
        a("v_add_f32 v28, v28, v34")
        a("v_add_f32 v29, v29, v35")
        a("v_add_f32 v30, v30, v36")
        a("v_add_f32 v31, v31, v37")
        round_pair(a, 28, 28, 40)
        round_pair(a, 30, 30, 41)
        a("v_mul_f32 v28, v28, v22")
        a("v_mul_f32 v29, v29, v23")
        a("v_mul_f32 v30, v30, v33")
        a("v_mul_f32 v31, v31, v33")
        round_pair(a, 28, 28, 40)
        round_pair(a, 30, 30, 41)
        a(f"v_mul_f32 v28, v28, v{48+2*t}")
        a(f"v_mul_f32 v29, v29, v{48+2*t}")
        round_pair(a, 28, 28, 40)
        a("v_add_f32 v28, v28, v30")
        a("v_add_f32 v29, v29, v31")
        a("v_cvt_pk_bf16_f32 v19, v28, v29")
        a("global_store_dword v18, v19, s[36:37]")
        if t == 3:
            stamp(11)
    if st:
        a("s_waitcnt vmcnt(0)")
    stamp(12)
    a.label("L_fin")
    if diag:
        a("s_waitcnt lgkmcnt(0) vmcnt(0)")
        a("s_cmp_lg_u32 s14, 4")
        a("s_cbranch_scc1 L_end")
        a("s_mov_b64 exec, 1")
        a("s_not_b32 s76, s76")
        for i, sidx in enumerate((0, 1, 2, 3, 7, 8, 9, 10, 12)):
            a(f"v_mov_b32 v1, {4*(i+1)}")
            a(f"v_mov_b32 v2, s{76+2*sidx}")
            a("global_atomic_umax v1, v2, s[38:39] sc1")
        a("s_mov_b64 exec, -1")
        a("s_branch L_end")
    if st:
        n = 13
        a("s_waitcnt lgkmcnt(0)")
        a("s_lshl_b32 s58, s2, 3")
        a("s_add_u32 s58, s58, s14")
        a("s_lshl_b32 s58, s58, 6")
        a(f"s_add_u32 s58, s58, {STAMP_OFF}")
        a("v_mov_b32 v1, s58")
        a("s_mov_b64 exec, 1")
        for i in range(n):
            a(f"v_mov_b32 v2, s{76+2*i}")
            a(f"global_store_dword v1, v2, s[34:35] offset:{4*i}")
        a("s_mov_b64 exec, -1")
    a.label("L_end")
    a("s_endpgm")
    return kernel_wrap(name, a.text(), vgpr=256)


def full_source(**kw):
    hdr = open("gated_mix__ssm_conv_h3__ssm_conv_s4__prompt.s.ref").read().split("; @launch")[0]
    src = hdr + f"; @launch grid=(256,1,1) block=(512,1,1) lds={LDS_TOTAL}\n"
    src += '.amdgcn_target "amdgcn-amd-amdhsa--gfx950"\n'
    src += gen_fused(KN, **kw)
    return src


if __name__ == "__main__":
    out = sys.argv[1]
    kw = {}
    for x in sys.argv[2:]:
        k, v = x.split("=")
        kw[k] = {"0": False, "1": True}.get(v, v)
    open(out, "w").write(full_source(**kw))
```

```python
import sys
from gen import Asm, vr, sr, kernel_wrap, KA, KN, XKV_OFF, XQ_OFF, G_OFF, KCOPY, KUNIT, XUNIT, round_pair, stage_chunk_write
from gen_prep import fbits, zpow, dpp_reduce, L2E_HI, L2E_LO, LN2, TABROW, TABCH
from sched import Stream, order_v3

KBASE = 0
TBASE = 2 * KUNIT
R2 = 4 * KUNIT
XBASE = R2
YBASE = XBASE + 4 * XUNIT
FBASE = YBASE + 32768
TAB = R2
KTAB = TAB + 2 * TABCH
NBASE = KTAB + 2 * 1536
LDS_TOTAL = NBASE + 64
STAMP_OFF = 16 << 20
FL_OFF = 7 << 20


def gen_fused(name, st=0, scx="sc1", scl="sc1", stream_kw=None, pf=False, pfwave=7, hprio=0):
    a = Asm()
    st = int(st)

    def stamp(i):
        if st == 1 or (st > 1 and (st >> (i + 1)) & 1):
            a(f"s_memrealtime s[{76+2*i}:{77+2*i}]")

    def cmul2(d, x, y, ny):
        a(f"v_mul_f32 {vr(d)}, {vr(x)}, {vr(y)}")
        a(f"v_mul_f32 {vr(d+1)}, {vr(x)}, {vr(y+1)}")
        a(f"v_fmac_f32 {vr(d)}, {vr(x+1)}, {vr(ny)}")
        a(f"v_fmac_f32 {vr(d+1)}, {vr(x+1)}, {vr(y)}")

    def neg(d, s):
        a(f"v_xor_b32 {vr(d)}, 0x80000000, {vr(s)}")

    def wr_u(addr, x, row, t):
        a(f"v_cvt_pk_f16_f32 {vr(t)}, {vr(x)}, -{vr(x+1)}")
        a(f"ds_write_b32 {vr(addr)}, {vr(t)} offset:{row*TABROW}")

    def wr_v(addr, x, r, t):
        a(f"v_cvt_pk_f16_f32 {vr(t)}, {vr(x)}, {vr(x+1)}")
        a(f"ds_write_b32 {vr(addr)}, {vr(t)} offset:{(48+r)*TABROW}")

    def front_fix(vD, vT, vLds):
        for j in range(16):
            a(f"v_mov_b32 {vr(vT+j)}, 0")
        a(f"v_subrev_u32 {vr(vT+16)}, 32, {vr(vLds)}")
        a(f"v_lshlrev_b32 {vr(vT+7)}, 16, {vr(vD)}")
        a(f"v_mov_b32 {vr(vT+11)}, {vr(vD)}")
        a(f"v_lshlrev_b32 {vr(vT+14)}, 16, {vr(vD)}")
        a(f"v_alignbit_b32 {vr(vT+15)}, {vr(vD+1)}, {vr(vD)}, 16")
        for c in range(4):
            a(f"ds_write_b128 {vr(vT+16)}, {vr(vT,4)} offset:{c*KCOPY}")
        for c in range(4):
            a(f"ds_write_b128 {vr(vT+16)}, {vr(vT+4*c,4)} offset:{c*KCOPY+16}")

    def poll_guard(cnt_reg, lim, done):
        a(f"s_cmp_gt_u32 {cnt_reg}, {lim}")
        a(f"s_cbranch_scc1 {done}")

    def gather_addr():
        a("v_and_b32 v206, 255, v0")
        a("v_lshlrev_b32 v206, 3, v206")
        a("v_lshrrev_b32 v207, 8, v0")
        a(f"v_mul_u32_u24 v207, 1536, v207")
        a(f"v_add_u32 v207, {KTAB}, v207")
        a("v_mov_b32 v208, 127")
        for e in range(0, 12, 2):
            a(f"v_add_u32 v209, {e}, v206")
            a(f"v_add_u32 v210, {e+1}, v206")
            a("v_cvt_f32_u32 v211, v209")
            a("v_cvt_f32_u32 v212, v210")
            a("v_cvt_pk_bf16_f32 v211, v211, v212")
            a("v_and_b32 v212, 0xffff, v211")
            a("v_lshrrev_b32 v211, 16, v211")
            a("v_subrev_u32 v212, 17024, v212")
            a("v_subrev_u32 v211, 17024, v211")
            a("v_med3_i32 v212, v209, v208, v212")
            a("v_med3_i32 v211, v210, v208, v211")
            a(f"v_lshl_add_u32 v{140+e}, v212, 1, v207")
            a(f"v_lshl_add_u32 v{141+e}, v211, 1, v207")
        a("v_lshrrev_b32 v210, 8, v0")
        a(f"v_mul_u32_u24 v210, {KUNIT}, v210")
        a("v_and_b32 v211, 255, v0")
        a("v_lshl_add_u32 v210, v211, 4, v210")
        a(f"v_add_u32 v52, {KBASE+32+2*KUNIT}, v210")

    stamp(0)
    a("s_cmp_ge_u32 s2, 256")
    a("s_cbranch_scc1 L_end")
    a("s_load_dwordx8 s[4:11], s[0:1], 0")
    a("s_load_dwordx4 s[40:43], s[0:1], 32")
    a("s_load_dwordx16 s[16:31], s[0:1], 56")
    a("s_load_dwordx2 s[32:33], s[0:1], 120")
    a("s_load_dwordx4 s[36:39], s[0:1], 128")
    a("s_load_dwordx2 s[34:35], s[0:1], 144")
    a("v_lshrrev_b32 v1, 6, v0")
    a("v_and_b32 v2, 63, v0")
    a("v_readfirstlane_b32 s14, v1")
    a("s_and_b32 s12, s2, 7")
    a("s_lshr_b32 s13, s2, 3")
    a("s_lshl_b32 s15, s12, 5")
    a("s_add_u32 s15, s15, s13")
    a("s_lshl_b32 s66, s15, 2")
    a("v_lshlrev_b32 v53, 4, v2")
    if pf:
        a(f"s_cmp_lg_u32 s14, {pfwave}")
        a("s_cbranch_scc1 L_nopf")
        a("s_getpc_b64 s[98:99]")
        a.label("L_pc")
        a("v_lshlrev_b32 v200, 7, v2")
        a("v_mov_b32 v205, s99")
        a("v_add_u32 v201, 8192, v200")
        a("v_min_u32 v201, L_end-L_pc, v201")
        a("v_add_co_u32 v202, vcc, s98, v200")
        a("v_addc_co_u32 v203, vcc, 0, v205, vcc")
        a("v_add_co_u32 v204, vcc, s98, v201")
        a("v_addc_co_u32 v205, vcc, 0, v205, vcc")
        a("global_load_dword v206, v[202:203], off")
        a("global_load_dword v207, v[204:205], off")
        a.label("L_nopf")
    a("s_cmp_lt_u32 s14, 4")
    a("s_cbranch_scc1 L_Tfront")
    a("s_lshl_b32 s60, s12, 7")
    a("s_lshl_b32 s61, s13, 16")
    a("s_add_u32 s62, s60, s61")
    a("v_bfe_u32 v3, v0, 4, 4")
    a("v_and_b32 v54, 15, v0")
    a("v_lshlrev_b32 v55, 12, v3")
    a("v_lshlrev_b32 v56, 3, v54")
    a("v_add3_u32 v55, v55, v56, s62")
    a("v_subrev_u32 v56, 1024, v55")
    a("v_subrev_u32 v57, 2048, v55")
    a("v_subrev_u32 v58, 3072, v55")
    a("v_lshlrev_b32 v59, 5, v54")
    a("s_lshl_b32 s63, s12, 9")
    a("v_add_u32 v59, s63, v59")
    a("s_waitcnt lgkmcnt(0)")
    stamp(1)
    for (srd, p) in ((44, 4), (48, 6), (52, 8)):
        a(f"s_mov_b32 s{srd}, s{p}")
        a(f"s_mov_b32 s{srd+1}, s{p+1}")
        a(f"s_mov_b32 s{srd+2}, {2<<20}")
        a(f"s_mov_b32 s{srd+3}, 0x20000")
    a("buffer_load_dwordx2 v[12:13], v58, s[48:51], 0 offen")
    a("buffer_load_dwordx2 v[14:15], v57, s[48:51], 0 offen")
    a("buffer_load_dwordx2 v[16:17], v56, s[48:51], 0 offen")
    for j in range(4):
        a(f"buffer_load_dwordx2 v[{18+2*j}:{19+2*j}], v55, s[48:51], 0 offen offset:{1024*j}")
    a("global_load_dwordx4 v[34:37], v59, s[10:11]")
    a("global_load_dwordx4 v[38:41], v59, s[10:11] offset:16")
    for j in range(4):
        a(f"buffer_load_dwordx2 v[{26+2*j}:{27+2*j}], v55, s[52:55], 0 offen offset:{1024*j}")
    for j in range(4):
        a(f"buffer_load_dwordx2 v[{4+2*j}:{5+2*j}], v55, s[44:47], 0 offen offset:{1024*j}")
    a("s_load_dword s68, s[42:43], s66")
    a("s_load_dword s69, s[30:31], s66")
    a("v_lshlrev_b32 v60, 1, v3")
    a("v_sub_u32 v60, 30, v60")
    a("v_lshrrev_b32 v61, 2, v60")
    a("v_and_b32 v62, 7, v54")
    a("v_xor_b32 v61, v61, v62")
    a("v_lshlrev_b32 v61, 4, v61")
    a("v_and_b32 v60, 3, v60")
    a("v_lshl_add_u32 v61, v60, 2, v61")
    a("v_lshl_add_u32 v42, v54, 9, v61")
    a(f"v_add_u32 v42, {TBASE}, v42")
    a("v_bfe_u32 v60, v0, 3, 5")
    a("v_and_b32 v61, 7, v0")
    a("v_lshrrev_b32 v62, 2, v60")
    a("v_xor_b32 v62, v61, v62")
    a("v_lshlrev_b32 v62, 4, v62")
    a("v_lshl_add_u32 v43, v60, 7, v62")
    a(f"v_add_u32 v43, {TBASE}, v43")
    a("v_lshlrev_b32 v60, 12, v60")
    a("v_lshl_add_u32 v44, v61, 4, v60")
    a("s_lshl_b32 s61, s12, 18")
    a("s_lshl_b32 s3, s13, 7")
    a("s_sub_u32 s61, s61, s3")
    a("s_add_u32 s61, s61, 3968")
    a("v_add_u32 v44, s61, v44")
    a("v_add_u32 v45, 0x20000, v44")
    a(f"s_add_u32 s70, s34, {XKV_OFF}")
    a("s_addc_u32 s71, s35, 0")
    a(f"s_add_u32 s72, s34, {XQ_OFF}")
    a("s_addc_u32 s73, s35, 0")
    a("s_lshl_b32 s61, s15, 13")
    a("s_add_u32 s56, s40, s61")
    a("s_addc_u32 s57, s41, 0")
    a("s_mov_b32 s58, 8192")
    a("s_mov_b32 s59, 0x20000")
    a("v_and_b32 v46, 255, v0")
    a("v_lshlrev_b32 v46, 4, v46")
    a("v_add_u32 v47, 4096, v46")
    a(f"v_add_u32 v48, {KBASE+32}, v46")
    a(f"v_add_u32 v49, {KUNIT}, v48")
    gather_addr()
    a("s_mov_b32 s62, 0x05040100")
    a("s_mov_b32 s63, 0x07060302")
    KU, W, AC, VU = 60, 88, 104, 120
    a("s_waitcnt vmcnt(10)")
    for row in range(7):
        for e in range(2):
            src = 12 + 2 * row + e
            a(f"v_lshlrev_b32 v{KU+4*row+2*e}, 16, v{src}")
            a(f"v_and_b32 v{KU+4*row+2*e+1}, 0xffff0000, v{src}")
    a("s_waitcnt vmcnt(8)")
    for e in range(2):
        s0, s1, s2_, s3 = 34 + 4 * e, 35 + 4 * e, 36 + 4 * e, 37 + 4 * e
        a(f"v_lshlrev_b32 v{W+0+2*e}, 16, v{s0}")
        a(f"v_lshlrev_b32 v{W+0+2*e+1}, 16, v{s2_}")
        a(f"v_and_b32 v{W+4+2*e}, 0xffff0000, v{s0}")
        a(f"v_and_b32 v{W+4+2*e+1}, 0xffff0000, v{s2_}")
        a(f"v_lshlrev_b32 v{W+8+2*e}, 16, v{s1}")
        a(f"v_lshlrev_b32 v{W+8+2*e+1}, 16, v{s3}")
        a(f"v_and_b32 v{W+12+2*e}, 0xffff0000, v{s1}")
        a(f"v_and_b32 v{W+12+2*e+1}, 0xffff0000, v{s3}")
    chains = [(row, e) for row in range(4) for e in range(2)]
    def acc(row, e): return AC + 4 * row + 2 * e
    for (row, e) in chains:
        a(f"v_pk_mul_f32 {vr(acc(row,e),2)}, {vr(KU+4*(row+0)+2*e,2)}, {vr(W+12+2*e,2)}")
    for j in (2, 1, 0):
        for (row, e) in chains:
            a(f"v_pk_fma_f32 {vr(acc(row,e),2)}, {vr(KU+4*(row+3-j)+2*e,2)}, {vr(W+4*j+2*e,2)}, {vr(acc(row,e),2)}")
    a("s_waitcnt vmcnt(4)")
    stamp(2)
    for row in range(4):
        for e in range(2):
            src = 26 + 2 * row + e
            a(f"v_lshlrev_b32 v{VU+4*row+2*e}, 16, v{src}")
            a(f"v_and_b32 v{VU+4*row+2*e+1}, 0xffff0000, v{src}")
    for (row, e) in chains:
        a(f"v_pk_mul_f32 {vr(acc(row,e),2)}, {vr(acc(row,e),2)}, {vr(VU+4*row+2*e,2)}")
    for j in range(4):
        e, x = j >> 1, j & 1
        a(f"v_cvt_pk_bf16_f32 v{60+2*j}, v{acc(3,e)+x}, v{acc(2,e)+x}")
        a(f"v_cvt_pk_bf16_f32 v{61+2*j}, v{acc(1,e)+x}, v{acc(0,e)+x}")
    for j in range(4):
        a(f"ds_write_b64 v42, v[{60+2*j}:{61+2*j}] offset:{j*128}")
    a("s_waitcnt vmcnt(0)")
    for j in range(4):
        e, x = j >> 1, j & 1
        a(f"v_perm_b32 v{68+2*j}, v{4+2*2+e}, v{4+2*3+e}, s{62+x}")
        a(f"v_perm_b32 v{69+2*j}, v{4+2*0+e}, v{4+2*1+e}, s{62+x}")
    for j in range(4):
        a(f"ds_write_b64 v42, v[{68+2*j}:{69+2*j}] offset:{8192 + j*128}")
    a("s_waitcnt lgkmcnt(0)")
    a("s_barrier")
    stamp(3)
    a("ds_read_b128 v[112:115], v43")
    a("ds_read_b128 v[116:119], v43 offset:8192")
    a("ds_read_b128 v[120:123], v43 offset:4096")
    a("ds_read_b128 v[124:127], v43 offset:12288")
    a("s_waitcnt lgkmcnt(3)")
    a(f"global_store_dwordx4 v44, v[112:115], s[70:71] {scx}")
    a("s_waitcnt lgkmcnt(2)")
    a(f"global_store_dwordx4 v44, v[116:119], s[72:73] {scx}")
    a("s_waitcnt lgkmcnt(1)")
    a(f"global_store_dwordx4 v45, v[120:123], s[70:71] {scx}")
    a("s_waitcnt lgkmcnt(0)")
    a(f"global_store_dwordx4 v45, v[124:127], s[72:73] {scx}")
    a("buffer_load_dwordx4 v[20:23], v46, s[56:59], 0 offen")
    a("buffer_load_dwordx2 v[24:25], v46, s[56:59], 0 offen offset:16")
    a("buffer_load_dwordx4 v[32:35], v47, s[56:59], 0 offen")
    a("buffer_load_dwordx2 v[36:37], v47, s[56:59], 0 offen offset:16")
    stamp(4)
    a("s_branch L_front_done")

    a.label("L_Tfront")
    a("s_and_b32 s64, s14, 1")
    a("s_lshr_b32 s65, s14, 1")
    for j in range(40, 50):
        a(f"v_mov_b32 v{j}, 0")
    a("s_lshl_b32 s61, s15, 1")
    a("s_add_u32 s61, s61, s64")
    a("s_lshl_b32 s61, s61, 8")
    a("s_lshl_b32 s3, s65, 7")
    a("v_lshlrev_b32 v68, 1, v2")
    a("v_add_u32 v69, s61, v68")
    a("v_add_u32 v68, s3, v69")
    a("v_xor_b32 v69, 128, v68")
    a("s_lshl_b32 s60, s2, 3")
    a("s_lshl_b32 s3, s14, 1")
    a("s_add_u32 s60, s60, s3")
    a("s_lshl_b32 s3, s60, 10")
    a("v_add_u32 v54, s3, v53")
    a("s_waitcnt lgkmcnt(0)")
    stamp(1)
    a("s_load_dword s67, s[28:29], s66")
    for j, p in enumerate((16, 18, 20, 22, 24, 26)):
        a(f"global_load_short_d16_hi v{40+j}, v68, s[{p}:{p+1}]")
    for j, p in enumerate((20, 22, 24, 26)):
        a(f"global_load_short_d16_hi v{46+j}, v69, s[{p}:{p+1}]")
    a("s_or_b32 s3, s2, s14")
    a("s_cmp_lg_u32 s3, 0")
    a("s_cbranch_scc1 L_nononce")
    a("s_memrealtime s[56:57]")
    a("v_mov_b32 v136, 0")
    a("s_waitcnt lgkmcnt(0)")
    a("s_or_b32 s56, s56, 1")
    a("v_mov_b32 v137, s56")
    a("s_mov_b64 exec, 1")
    a("global_store_dword v136, v137, s[38:39] sc1")
    a("s_mov_b64 exec, -1")
    a.label("L_nononce")
    gather_addr()
    a("s_waitcnt vmcnt(0) lgkmcnt(0)")
    stamp(2)
    a("s_cmp_lg_u32 s14, 1")
    a("s_cbranch_scc1 L_nn0")
    a("v_mov_b32 v136, 0")
    a("global_load_dword v137, v136, s[38:39] sc1")
    a.label("L_nn0")
    a("s_lshl_b32 s3, s67, 16")
    a("s_and_b32 s61, s67, 0xffff0000")
    a("s_cmp_eq_u32 s64, 0")
    a("s_cselect_b32 s3, s3, s61")
    a("v_mov_b32 v60, s3")
    a(f"v_mul_f32 v61, 0x{L2E_HI:08x}, v60")
    a(f"s_mov_b32 s61, 0x{L2E_HI:08x}")
    a("v_fma_f32 v62, v60, s61, -v61")
    a(f"v_mov_b32 v63, 0x{L2E_LO:08x}")
    a("v_fmac_f32 v62, v60, v63")
    a("v_exp_f32 v61, v61")
    a(f"v_mul_f32 v62, 0x{LN2:08x}, v62")
    a("v_fma_f32 v61, v61, v62, v61")
    a("v_cvt_pk_bf16_f32 v61, v61, v61")
    a("v_and_b32 v61, 0xffff0000, v61")
    a("v_mul_f32 v62, v61, v40")
    a("v_mul_f32 v63, v61, v41")
    a(f"v_mul_f32 v62, 0x{L2E_HI:08x}, v62")
    a("v_mul_f32 v63, 0.15915494, v63")
    for (dst, b, cc) in ((64, 42, 44), (66, 46, 48)):
        a(f"v_mul_f32 v68, v61, v{b}")
        a(f"v_mul_f32 v69, v61, v{b+1}")
        neg(70, 69)
        cmul2(dst, cc, 68, 70)
    a("v_max_f32 v68, |v64|, |v65|")
    a("v_max3_f32 v68, |v66|, |v67|, v68")
    zpow(a, 74, 75, 62, 63, 128, 70, 71)
    dpp_reduce(a, "v_max_f32", 68)
    neg(76, 75)
    a("v_readlane_b32 s74, v68, 63")
    a(f"s_mul_i32 s75, s64, {TABCH}")
    a(f"s_max_u32 s74, s74, {fbits(1e-30)}")
    a("v_mov_b32 v68, s74")
    a("v_rcp_f32 v69, v68")
    a(f"s_add_u32 s75, s75, {TAB}")
    a("s_lshl_b32 s3, s65, 8")
    a("s_add_u32 s3, s3, s75")
    a("v_mul_f32 v64, v64, v69")
    a("v_mul_f32 v65, v65, v69")
    a("v_lshlrev_b32 v72, 2, v2")
    a("v_add_u32 v72, s3, v72")
    a("s_lshl_b32 s3, s64, 2")
    a(f"s_add_u32 s3, s3, {NBASE+4}")
    a("v_mov_b32 v69, s3")
    a("ds_write_b32 v69, v68")
    grow = {0: 0, 1: 8, 2: 16, 3: 20, 4: 24, 5: 26, 6: 28, 7: 30}
    for h in range(8, 17):
        grow[h] = 32 + h - 8
    zpow(a, 78, 79, 62, 63, 8, 70, 71)
    neg(80, 79)
    ZB = 100
    def Z(d): return ZB + 4 * (d - 1)
    zpow(a, Z(1), Z(1) + 1, 62, 63, 1, 70, 71)
    neg(Z(1) + 2, Z(1) + 1)
    for (d, x, y) in ((2, 1, 1), (3, 2, 1), (4, 2, 2), (5, 4, 1), (6, 4, 2), (7, 4, 3)):
        cmul2(Z(d), Z(x), Z(y), Z(y) + 2)
        neg(Z(d) + 2, Z(d) + 1)
    a("v_mov_b32 v82, 1.0")
    a("v_mov_b32 v83, 0")
    wr_v(72, 82, 0, 73)
    wr_v(72, 78, 1, 77)
    cv, cg = 78, 64
    tog = 0
    for h in range(0, 17):
        if h > 0:
            ng = 86 if cg != 86 else 88
            cmul2(ng, cg, 74, 76)
            cg = ng
        if 1 <= h <= 14:
            nv = 82 if cv != 82 else 84
            cmul2(nv, cv, 78, 80)
            cv = nv
        wr_u(72, cg, grow[h], 73)
        if 1 <= h <= 14:
            wr_v(72, cv, h + 1, 77)
        if h < 2:
            ds = [(d, grow[h] + d) for d in range(1, 8)]
        elif h < 4:
            ds = [(2, grow[h] + 1), (4, grow[h] + 2), (6, grow[h] + 3)]
        elif h < 8:
            ds = [(4, grow[h] + 1)]
        else:
            ds = []
        for (d, row) in ds:
            dst = 90 + 2 * tog
            cmul2(dst, cg, Z(d), Z(d) + 2)
            wr_u(72, dst, row, 94 + tog)
            tog ^= 1
    a("s_cmp_lg_u32 s14, 1")
    a("s_cbranch_scc1 L_nonce_done")
    a("v_mov_b32 v136, 0")
    a("s_mov_b32 s28, 0")
    a("s_waitcnt vmcnt(0)")
    a.label("L_nonce_poll")
    a("v_readfirstlane_b32 s3, v137")
    a("s_add_u32 s28, s28, 1")
    poll_guard("s28", "0x100000", "L_nonce_got")
    a("s_cmp_lg_u32 s3, 0")
    a("s_cbranch_scc1 L_nonce_got")
    a("global_load_dword v137, v136, s[38:39] sc1")
    a("s_waitcnt vmcnt(0)")
    a("s_branch L_nonce_poll")
    a.label("L_nonce_got")
    a(f"v_mov_b32 v136, {NBASE}")
    a("ds_write_b32 v136, v137")
    a.label("L_nonce_done")
    stamp(3)
    a("s_waitcnt lgkmcnt(0)")
    a("s_barrier")
    stamp(4)
    a("global_load_dwordx4 v[4:7], v54, s[4:5]")
    a("global_load_dwordx4 v[8:11], v54, s[4:5] offset:1024")
    a("global_load_dwordx4 v[12:15], v53, s[32:33]")

    a.label("L_front_done")
    a(f"v_mov_b32 v135, {NBASE}")
    a("ds_read_b96 v[132:134], v135")
    a("s_cmp_ge_u32 s14, 6")
    a("s_cbranch_scc1 L_jobdone")
    a("s_and_b32 s64, s14, 1")
    a("s_lshr_b32 s3, s14, 1")
    a(f"s_mul_i32 s75, s64, {TABCH}")
    a(f"s_add_u32 s75, s75, {TAB}")
    a("v_and_b32 v60, 15, v2")
    a("v_lshrrev_b32 v61, 4, v2")
    a(f"v_mul_u32_u24 v62, {TABROW}, v60")
    a("v_lshl_add_u32 v62, v61, 4, v62")
    a("v_add_u32 v62, s75, v62")
    a(f"s_mul_i32 s61, s3, {16*TABROW}")
    a("v_add_u32 v63, s61, v62")
    for kk in range(8):
        a(f"ds_read_b128 {vr(80+4*kk,4)}, v63 offset:{64*kk}")
        a(f"ds_read_b128 {vr(168+4*kk,4)}, v62 offset:{48*TABROW + 64*kk}")
    for kk in range(8):
        a(f"s_waitcnt lgkmcnt({14-2*kk})")
        if kk == 0:
            a("v_readfirstlane_b32 s74, v133")
            a("v_readfirstlane_b32 s75, v134")
        srcc = "0" if kk == 0 else "v[64:67]"
        a(f"v_mfma_f32_16x16x32_f16 v[64:67], {vr(80+4*kk,4)}, {vr(168+4*kk,4)}, {srcc}")
    a("s_cmp_eq_u32 s64, 0")
    a("s_cselect_b32 s74, s74, s75")
    a("s_mul_i32 s61, s64, 1536")
    a(f"s_add_u32 s61, s61, {KTAB}")
    a("s_nop 5")
    for r in range(4):
        a(f"v_mul_f32 v{64+r}, s74, v{64+r}")
    a("v_cvt_pk_bf16_f32 v68, v64, v65")
    a("v_cvt_pk_bf16_f32 v69, v66, v67")
    a("s_cmp_eq_u32 s3, 1")
    a("s_cbranch_scc1 L_job1")
    a("s_cmp_eq_u32 s3, 2")
    a("s_cbranch_scc1 L_job2")
    a("v_lshrrev_b32 v70, 1, v61")
    a("v_lshlrev_b32 v70, 8, v70")
    a("v_lshl_add_u32 v70, v60, 4, v70")
    a("v_and_b32 v71, 1, v61")
    a("v_lshl_add_u32 v70, v71, 3, v70")
    a("v_add_u32 v70, s61, v70")
    a("ds_write_b64 v70, v[68:69]")
    a("s_branch L_jobdone")
    a.label("L_job1")
    a("v_lshlrev_b32 v70, 7, v61")
    a("v_lshl_add_u32 v71, v60, 3, v70")
    a("v_lshl_add_u32 v72, v60, 2, v70")
    a("v_cmp_gt_u32 vcc, 2, v61")
    a("v_mov_b32 v73, 64")
    a("s_nop 1")
    a("v_cndmask_b32 v70, v72, v71, vcc")
    a("v_cndmask_b32 v73, v73, 4, vcc")
    a("v_add_u32 v70, s61, v70")
    a("v_add_u32 v73, v70, v73")
    a("ds_write_b32 v70, v68 offset:512")
    a("ds_write_b32 v73, v69 offset:512")
    a("s_branch L_jobdone")
    a.label("L_job2")
    a("v_lshlrev_b32 v70, 7, v61")
    a("v_lshl_add_u32 v70, v60, 1, v70")
    a("v_add_u32 v70, s61, v70")
    a("ds_write_b16 v70, v68 offset:1024")
    a("ds_write_b16_d16_hi v70, v68 offset:1056")
    a("ds_write_b16 v70, v69 offset:1088")
    a("ds_write_b16_d16_hi v70, v69 offset:1120")
    a.label("L_jobdone")
    a("s_waitcnt lgkmcnt(0)")
    a("v_readfirstlane_b32 s27, v132")
    a("s_barrier")
    stamp(5)
    for e in range(0, 12, 2):
        a(f"ds_read_u16 v{60+e//2}, v{140+e}")
        a(f"ds_read_u16_d16_hi v{68+e//2}, v{141+e}")
    a("s_and_b32 s20, s14, 3")
    a(f"s_mul_i32 s21, s20, {XUNIT}")
    a(f"s_add_u32 s21, s21, {XBASE}")
    a("s_and_b32 s3, s20, 1")
    a("s_lshl_b32 s61, s15, 1")
    a("s_add_u32 s61, s61, s3")
    a("s_lshl_b32 s61, s61, 12")
    a("s_lshr_b32 s3, s20, 1")
    a("s_cmp_eq_u32 s3, 0")
    a(f"s_cselect_b32 s3, {XKV_OFF}, {XQ_OFF}")
    a("s_add_u32 s61, s61, s3")
    a("s_lshr_b32 s3, s14, 2")
    a("s_lshl_b32 s3, s3, 11")
    a("s_add_u32 s61, s61, s3")
    a("s_add_u32 s22, s34, s61")
    a("s_addc_u32 s23, s35, 0")
    a("s_add_u32 s24, s21, s3")
    a("s_waitcnt lgkmcnt(0)")
    for e in range(6):
        a(f"v_and_b32 v{68+e}, 0xffff0000, v{68+e}")
        a(f"v_or_b32 v{60+e}, v{60+e}, v{68+e}")
    stage_chunk_write(a, 60, 80, 52)
    a("s_cmp_lg_u32 s20, 0")
    a("s_cbranch_scc1 L_nofront2")
    a("s_mov_b64 exec, 1")
    front_fix(60, 92, 52)
    a("s_mov_b64 exec, -1")
    a.label("L_nofront2")
    a("s_cmp_lt_u32 s14, 4")
    a("s_cbranch_scc1 L_Tmid")
    a("s_lshl_b32 s3, s2, 7")
    a("s_lshl_b32 s61, s14, 2")
    a("s_add_u32 s3, s3, s61")
    a(f"s_add_u32 s3, s3, {FL_OFF-16}")
    a("v_mov_b32 v134, s3")
    a("v_mov_b32 v135, s27")
    a("s_waitcnt vmcnt(4)")
    stamp(10)
    a("s_mov_b64 exec, 1")
    a("global_store_dword v134, v135, s[34:35] sc1")
    a("s_mov_b64 exec, -1")
    a("s_waitcnt vmcnt(3)")
    stage_chunk_write(a, 20, 112, 48)
    a("s_waitcnt vmcnt(1)")
    stage_chunk_write(a, 32, 124, 49)
    a("s_cmp_lg_u32 s14, 4")
    a("s_cbranch_scc1 L_nofront1")
    a("s_mov_b64 exec, 1")
    front_fix(20, 152, 48)
    front_fix(32, 172, 49)
    a("s_mov_b64 exec, -1")
    a.label("L_nofront1")
    a("s_sub_u32 s26, s14, 4")
    a("v_lshlrev_b32 v67, 8, v2")
    a(f"v_add_u32 v67, {FBASE}, v67")
    a("v_mov_b32 v72, 0")
    a("s_mov_b32 exec_hi, 0")
    a("ds_write_b32 v67, v72")
    a("s_mov_b64 exec, -1")
    a("s_lshl_b32 s3, s26, 6")
    a("v_add_u32 v10, s3, v2")
    a("v_lshrrev_b32 v11, 4, v10")
    a("v_bfe_u32 v12, v10, 2, 2")
    a("v_lshlrev_b32 v13, 1, v12")
    a("v_xor_b32 v11, v11, v13")
    a("v_lshlrev_b32 v11, 4, v11")
    a("v_lshl_add_u32 v11, v12, 8, v11")
    a("v_and_b32 v12, 3, v10")
    a("v_lshl_add_u32 v11, v12, 2, v11")
    a(f"v_add_u32 v12, {YBASE}, v11")
    a("v_lshlrev_b32 v13, 3, v10")
    a(f"v_add_u32 v13, {G_OFF}, v13")
    a("v_lshlrev_b32 v14, 1, v10")
    a(f"v_sub_u32 v14, {XBASE + 4094 - 3584}, v14")
    a("v_lshlrev_b32 v15, 10, v10")
    a("s_lshl_b32 s3, s15, 2")
    a("v_add_u32 v15, s3, v15")
    a("v_and_b32 v9, 3, v2")
    a("v_lshlrev_b32 v9, 8, v9")
    a(f"v_add_u32 v9, {FBASE}, v9")
    a("v_add_u32 v1, s24, v53")
    a("v_mov_b32 v7, v53")
    a("v_and_b32 v16, 31, v2")
    a("v_lshlrev_b32 v16, 10, v16")
    a("s_lshl_b32 s3, s12, 7")
    a(f"s_add_u32 s3, s3, {FL_OFF}")
    a("v_add_u32 v16, s3, v16")
    a("s_cmp_lg_u32 s14, 4")
    a("s_cbranch_scc1 L_nopoll0")
    a("s_mov_b32 exec_hi, 0")
    a("global_load_dwordx4 v[100:103], v16, s[34:35] sc1")
    a("s_mov_b64 exec, -1")
    a.label("L_nopoll0")
    stamp(6)
    a("s_waitcnt lgkmcnt(0)")
    a("s_branch L_mid_done")
    a.label("L_Tmid")
    a("s_waitcnt vmcnt(0)")
    for e in range(4):
        a(f"v_lshlrev_b32 v{60+2*e}, 16, v{12+e}")
        a(f"v_and_b32 v{61+2*e}, 0xffff0000, v{12+e}")
    for rr in range(2):
        B = 68 + 8 * rr
        for e in range(4):
            a(f"v_lshlrev_b32 v{B+2*e}, 16, v{4+4*rr+e}")
            a(f"v_and_b32 v{B+2*e+1}, 0xffff0000, v{4+4*rr+e}")
    for rr in range(2):
        B = 68 + 8 * rr
        for e in range(8):
            a(f"v_mul_f32 v{B+e}, v{B+e}, v{60+e}")
    for rr in range(2):
        B = 68 + 8 * rr
        for e in range(4):
            round_pair(a, B + 2 * e, B + 2 * e, 84 + e)
    for rr in range(2):
        B = 68 + 8 * rr
        for (x, y) in ((0, 1), (2, 3), (4, 5), (6, 7), (0, 2), (4, 6), (0, 4)):
            a(f"v_add_f32 v{B+x}, v{B+x}, v{B+y}")
    for sh in (1, 2, 4, 8):
        a("s_nop 0")
        for B in (68, 76):
            a(f"v_add_f32_dpp v{B}, v{B}, v{B} row_shr:{sh} row_mask:0xf bank_mask:0xf bound_ctrl:0")
    a("s_nop 0")
    for B in (68, 76):
        a(f"v_add_f32_dpp v{B}, v{B}, v{B} row_bcast:15 row_mask:0xa bank_mask:0xf")
    a("s_nop 0")
    for B in (68, 76):
        a(f"v_add_f32_dpp v{B}, v{B}, v{B} row_bcast:31 row_mask:0xc bank_mask:0xf")
    a("v_cvt_pk_bf16_f32 v68, v68, v76")
    a("v_and_b32 v76, 0xffff0000, v68")
    a("v_lshlrev_b32 v68, 16, v68")
    for B in (68, 76):
        a(f"v_mul_f32 v{B}, {fbits(-1.4426950408889634)}, v{B}")
    for B in (68, 76):
        a(f"v_exp_f32 v{B}, v{B}")
    a("s_nop 0")
    for B in (68, 76):
        a(f"v_add_f32 v{B}, 1.0, v{B}")
    for B in (68, 76):
        a(f"v_rcp_f32 v{B}, v{B}")
    a("s_nop 0")
    a("v_cvt_pk_bf16_f32 v68, v68, v76")
    a("v_and_b32 v18, 0xffff0000, v68")
    a("v_lshlrev_b32 v16, 16, v68")
    a("s_lshl_b32 s3, s60, 3")
    a(f"s_add_u32 s3, s3, {G_OFF}")
    a("v_mov_b32 v62, s3")
    a("v_mov_b32 v17, s27")
    a("v_mov_b32 v19, s27")
    a("s_mov_b32 exec_lo, 0")
    a("s_mov_b32 exec_hi, 0x80000000")
    a("global_store_dwordx2 v62, v[16:17], s[34:35] sc1")
    a("global_store_dwordx2 v62, v[18:19], s[34:35] offset:8 sc1")
    a("s_mov_b64 exec, -1")
    for j in range(4):
        a(f"v_mov_b32 v{72+j}, 0")
    a("v_add_u32 v67, s21, v53")
    a("s_mov_b32 exec_hi, 0")
    a("ds_write_b128 v67, v[72:75] offset:4096")
    a("s_mov_b64 exec, -1")
    a(f"s_mul_i32 s25, s20, {KUNIT}")
    a("v_and_b32 v31, 15, v2")
    a("v_lshrrev_b32 v32, 4, v2")
    a("v_add_u32 v33, 1, v31")
    a("v_and_b32 v34, 3, v33")
    a("v_lshrrev_b32 v33, 2, v33")
    a(f"v_mul_u32_u24 v34, {KCOPY}, v34")
    a("v_lshlrev_b32 v33, 3, v33")
    a("v_lshlrev_b32 v35, 4, v32")
    a("v_add3_u32 v34, v34, v33, v35")
    a("v_add_u32 v4, s25, v34")
    a("v_sub_u32 v33, 15, v31")
    a("v_lshlrev_b32 v33, 5, v33")
    a("v_add3_u32 v5, v33, v35, s21")
    a("v_lshlrev_b32 v33, 1, v32")
    a("v_xor_b32 v33, v31, v33")
    a("v_lshlrev_b32 v33, 4, v33")
    a("v_lshl_add_u32 v33, v32, 8, v33")
    a("s_lshl_b32 s3, s20, 10")
    a(f"s_add_u32 s3, s3, {YBASE}")
    a("v_add_u32 v6, s3, v33")
    a("s_lshl_b32 s3, s20, 8")
    a(f"s_add_u32 s3, s3, {FBASE}")
    a("v_lshlrev_b32 v3, 2, v2")
    a("v_add_u32 v3, s3, v3")
    a("v_add_u32 v1, s24, v53")
    a("v_mov_b32 v7, v53")
    a("v_mov_b32 v0, 1")
    stamp(6)
    a("s_waitcnt lgkmcnt(0)")
    a.label("L_mid_done")
    a(f"v_mov_b32 v136, {NBASE}")
    a("s_barrier")
    stamp(7)
    a("s_cmp_ge_u32 s14, 4")
    a("s_cbranch_scc1 L_helper_go")
    kw = dict(credit_per_slot=3.5, horizon=80, safe_slots=12)
    kw.update(stream_kw or {})
    strm = Stream(a, order_v3(steps3=((0,), (1,), (2,), (3,))), 4, 5, 6, frag_base=40, nslots=54, acc_base=8,
                  preload=[('A', m) for m in range(32)], vF=3, vOne=0, **kw)
    strm.emit_preload()
    a("s_barrier")
    stamp(8)
    a(f"global_load_dwordx4 v[8:11], v7, s[22:23] {scl}")
    a(f"global_load_dwordx4 v[12:15], v7, s[22:23] offset:1024 {scl}")
    a("s_waitcnt vmcnt(1)")
    a("ds_write_b128 v1, v[8:11]")
    a("s_waitcnt vmcnt(0)")
    a("ds_write_b128 v1, v[12:15] offset:1024")
    a("s_waitcnt lgkmcnt(0)")
    a("s_barrier")
    stamp(9)
    info = strm.run()
    sys.stderr.write(f"stream: {info}\n")
    stamp(10)
    a("s_branch L_fin")

    a.label("L_helper_go")
    for j in range(20, 24):
        a(f"v_mov_b32 v{j}, 0")
    a("s_lshl_b32 s3, s68, 16")
    a("v_mov_b32 v24, s3")
    a("s_and_b32 s3, s68, 0xffff0000")
    a("v_mov_b32 v25, s3")
    a("s_lshl_b32 s3, s69, 16")
    a("v_mov_b32 v26, s3")
    a("s_and_b32 s3, s69, 0xffff0000")
    a("v_mov_b32 v27, s3")
    a("s_cmp_lg_u32 s14, 4")
    a("s_cbranch_scc1 L_gload")
    a("s_mov_b32 s28, 0")
    a("s_mov_b32 exec_hi, 0")
    a("global_load_dwordx4 v[104:107], v16, s[34:35] sc1")
    a.label("L_poll1")
    a("s_waitcnt vmcnt(1)")
    for (R, nxt) in ((100, None),):
        pass
    def chk(R):
        a(f"v_xor_b32 v108, s27, v{R}")
        a(f"v_xor_b32 v109, s27, v{R+1}")
        a(f"v_xor_b32 v110, s27, v{R+2}")
        a(f"v_xor_b32 v111, s27, v{R+3}")
        a("v_or3_b32 v108, v108, v109, v110")
        a("v_or_b32 v108, v108, v111")
        a("v_cmp_ne_u32 vcc, 0, v108")
    chk(100)
    a("s_add_u32 s28, s28, 1")
    poll_guard("s28", "0x100000", "L_poll1_done")
    a("s_cbranch_vccz L_poll1_done")
    a("global_load_dwordx4 v[100:103], v16, s[34:35] sc1")
    a("s_waitcnt vmcnt(1)")
    chk(104)
    a("s_cbranch_vccz L_poll1_done")
    a("global_load_dwordx4 v[104:107], v16, s[34:35] sc1")
    a("s_branch L_poll1")
    a.label("L_poll1_done")
    a("s_mov_b64 exec, -1")
    a.label("L_gload")
    a("s_barrier")
    stamp(8)
    a(f"global_load_dwordx4 v[40:43], v7, s[22:23] {scl}")
    a(f"global_load_dwordx4 v[44:47], v7, s[22:23] offset:1024 {scl}")
    for t in range(8):
        a(f"v_add_u32 v16, {t*2048}, v13")
        a(f"global_load_dwordx2 v[{48+2*t}:{49+2*t}], v16, s[34:35] sc1")
    a("s_waitcnt vmcnt(9)")
    a("ds_write_b128 v1, v[40:43]")
    a("s_waitcnt vmcnt(8)")
    a("ds_write_b128 v1, v[44:47] offset:1024")
    a("s_waitcnt lgkmcnt(0)")
    a("s_barrier")
    stamp(9)
    if int(hprio):
        a(f"s_setprio {int(hprio)}")
    a("s_waitcnt vmcnt(0)")
    a("s_mov_b32 s28, 0")
    a.label("L_poll2")
    a("v_xor_b32 v17, s27, v49")
    for t in range(1, 8):
        a(f"v_xor_b32 v16, s27, v{49+2*t}")
        a("v_or_b32 v17, v17, v16")
    a("v_cmp_ne_u32 vcc, 0, v17")
    a("s_add_u32 s28, s28, 1")
    poll_guard("s28", "0x100000", "L_poll2_done")
    a("s_cbranch_vccz L_poll2_done")
    for t in range(8):
        a(f"v_add_u32 v16, {t*2048}, v13")
        a(f"global_load_dwordx2 v[{48+2*t}:{49+2*t}], v16, s[34:35] sc1")
    a("s_waitcnt vmcnt(0)")
    a("s_branch L_poll2")
    a.label("L_poll2_done")
    PB = 64
    def PW(t): return PB + 8 * t
    for t in range(8):
        for j in range(4):
            a(f"v_mov_b32 v{128+4*t+j}, 0")
    def prework(tt):
        R = 128 + 4 * tt
        P = PW(tt)
        a(f"v_mul_f32 v{P+2}, v{R+2}, v26")
        a(f"v_mul_f32 v{P+3}, v{R+3}, v27")
        a(f"v_sub_f32 v{P+4}, 1.0, v{48+2*tt}")
        a(f"v_mul_f32 v{P}, v{R+2}, v{48+2*tt}")
        a(f"v_mul_f32 v{P+1}, v{R+3}, v{48+2*tt}")
        round_pair(a, P + 2, P + 2, 41)
        a(f"v_cvt_pk_bf16_f32 v42, v{P+4}, v{P+4}")
        a(f"v_and_b32 v{P+4}, 0xffff0000, v42")
    for t in range(8):
        xo = (7 - t) * 512
        R = 128 + 4 * t
        a(f"ds_read_u16_d16_hi v{R}, v14 offset:{xo}")
        a(f"ds_read_u16_d16_hi v{R+1}, v14 offset:{xo+XUNIT}")
        a(f"ds_read_u16_d16_hi v{R+2}, v14 offset:{xo+2*XUNIT}")
        a(f"ds_read_u16_d16_hi v{R+3}, v14 offset:{xo+3*XUNIT}")
    a("s_waitcnt lgkmcnt(0)")
    prework(0); prework(1)
    for t in range(8):
        P = PW(t)
        R = 128 + 4 * t
        a("s_mov_b32 s28, 0")
        a(f"v_add_u32 v18, {t*256*1024}, v15")
        yo = t * 4096
        a.label(f"L_ypoll{t}")
        a(f"ds_read_b32 v17, v9 offset:{t*1024}")
        a(f"ds_read_b32 v30, v12 offset:{yo+2048}")
        a(f"ds_read_b32 v31, v12 offset:{yo+3072}")
        a(f"ds_read_b32 v28, v12 offset:{yo}")
        a(f"ds_read_b32 v29, v12 offset:{yo+1024}")
        a("s_add_u32 s28, s28, 1")
        a("s_waitcnt lgkmcnt(4)")
        a("v_cmp_ne_u32 vcc, 1, v17")
        poll_guard("s28", "0x400000", f"L_ygo{t}")
        a(f"s_cbranch_vccz L_ygo{t}")
        a("s_waitcnt lgkmcnt(0)")
        a("s_sleep 1")
        a(f"s_branch L_ypoll{t}")
        a.label(f"L_ygo{t}")
        a("s_waitcnt lgkmcnt(2)")
        round_pair(a, 30, 30, 41)
        a(f"v_add_f32 v30, v30, v{P+2}")
        a(f"v_add_f32 v31, v31, v{P+3}")
        round_pair(a, 30, 30, 41)
        a(f"v_mul_f32 v30, v30, v{P+4}")
        a(f"v_mul_f32 v31, v31, v{P+4}")
        a("s_waitcnt lgkmcnt(0)")
        a(f"v_fmac_f32 v28, v{R}, v24")
        a(f"v_fmac_f32 v29, v{R+1}, v25")
        round_pair(a, 30, 30, 41)
        a(f"v_fmac_f32 v30, v28, v{P}")
        a(f"v_fmac_f32 v31, v29, v{P+1}")
        a("v_cvt_pk_bf16_f32 v19, v30, v31")
        a("global_store_dword v18, v19, s[36:37]")
        if t + 2 < 8:
            prework(t + 2)
        if t == 3:
            stamp(11)
    if st:
        a("s_waitcnt vmcnt(0)")
    stamp(12)
    a.label("L_fin")
    if st:
        n = 13
        a("s_waitcnt lgkmcnt(0)")
        a("s_lshl_b32 s58, s2, 3")
        a("s_add_u32 s58, s58, s14")
        a("s_lshl_b32 s58, s58, 6")
        a(f"s_add_u32 s58, s58, {STAMP_OFF}")
        a("v_mov_b32 v1, s58")
        a("s_mov_b64 exec, 1")
        for i in range(n):
            a(f"v_mov_b32 v2, s{76+2*i}")
            a(f"global_store_dword v1, v2, s[34:35] offset:{4*i}")
        a("s_mov_b64 exec, -1")
    a.label("L_end")
    a("s_endpgm")
    return kernel_wrap(name, a.text(), vgpr=256)


def full_source(**kw):
    hdr = open("gated_mix__ssm_conv_h3__ssm_conv_s4__prompt.s.ref").read().split("; @launch")[0]
    src = hdr + f"; @launch grid=(256,1,1) block=(512,1,1) lds={LDS_TOTAL}\n"
    src += '.amdgcn_target "amdgcn-amd-amdhsa--gfx950"\n'
    src += gen_fused(KN, **kw)
    return src


if __name__ == "__main__":
    out = sys.argv[1]
    kw = {}
    for x in sys.argv[2:]:
        k, v = x.split("=")
        kw[k] = {"0": False, "1": True}.get(v, v)
    open(out, "w").write(full_source(**kw))
```

```python
from gen import vr

def order_v2():
    o = []
    for u in range(4):
        for r in range(8):
            for i in range(0, 4 - u):
                o.append((u + i, i, r))
    for u in range(7, 0, -1):
        for r in range(8):
            for i in range(4):
                t = u + i
                if 4 <= t <= 7:
                    o.append((t, i, r))
    for u in range(4):
        for r in range(8):
            for i in range(4, 8):
                t = u + i
                if t <= 7:
                    o.append((t, i, r))
    assert len(o) == 288 and len(set(o)) == 288
    return o


class Stream:
    def __init__(self, a, order, vA, vB, vY, frag_base, nslots, acc_base, preload=(),
                 credit_per_slot=4.0, costA=4.8, costB=4.0, costW=8.0, horizon=48, urgent=10, safe_slots=9,
                 max_aux=2, vF=None, vOne=None):
        self.a = a
        self.vF, self.vOne = vF, vOne
        self.order = order
        self.vA, self.vB, self.vY = vA, vB, vY
        self.fb, self.ns, self.ab = frag_base, nslots, acc_base
        self.N = len(order)
        self.need = [(('A', 8 * i + r), ('B', 8 * (t - i) - r)) for (t, i, r) in order]
        self.uses = {}
        for k, fs in enumerate(self.need):
            for f in fs:
                self.uses.setdefault(f, []).append(k)
        self.slot_of = {}
        self.slot_frag = [None] * nslots
        self.preload = list(preload)
        for s, f in enumerate(self.preload):
            self.slot_of[f] = s
            self.slot_frag[s] = f
        self.p = dict(cps=credit_per_slot, cA=costA, cB=costB, cW=costW, hor=horizon, urg=urgent, safe=safe_slots,
                      maxaux=max_aux)

    def reg(self, f):
        return self.fb + 4 * self.slot_of[f]

    def emit_load(self, f):
        a = self.a
        reg = self.reg(f)
        if f[0] == 'A':
            off = 64 * f[1]
            a(f"ds_read_b64 {vr(reg,2)}, {vr(self.vA)} offset:{off}")
            a(f"ds_read_b64 {vr(reg+2,2)}, {vr(self.vA)} offset:{off+8}")
            return 2
        off = 3584 - 64 * f[1]
        a(f"ds_read_b128 {vr(reg,4)}, {vr(self.vB)} offset:{off}")
        return 1

    def emit_preload(self):
        for f in self.preload:
            self.emit_load(f)

    def next_use(self, f, k):
        for x in self.uses[f]:
            if x >= k:
                return x
        return 1 << 30

    def run(self):
        a, N, p = self.a, self.N, self.p
        last_of_tile, first_of_tile = {}, {}
        for k, (t, i, r) in enumerate(self.order):
            last_of_tile[t] = k
            first_of_tile.setdefault(t, k)
        ds_seq = 0
        seq_slot = []
        load_seq = {f: -1 for f in self.preload}
        done_upto = 0
        credit = 8.0
        pending_w = []
        icount = 0
        nloads = 0
        nwaits = 0
        for k in range(N):
            aux = 0
            credit = min(credit + p['cps'], 12.0) if k > 0 else 40.0
            maxaux = p['maxaux'] if k > 0 else 24
            for pw in list(pending_w):
                if icount >= pw[1] and aux < maxaux:
                    t = pw[0]
                    a(f"ds_write_b128 {vr(self.vY)}, {vr(self.ab+4*t,4)} offset:{t*4096}")
                    icount += 1; aux += 1
                    seq_slot.append(k); ds_seq += 1
                    credit -= p['cW']
                    if self.vF is not None:
                        a(f"ds_write_b32 {vr(self.vF)}, {vr(self.vOne)} offset:{t*1024}")
                        icount += 1; aux += 1
                        seq_slot.append(k); ds_seq += 1
                        credit -= 2
                    pending_w.remove(pw)
            while True:
                cand = None
                for kk in range(k, min(N, k + p['hor'])):
                    for f in self.need[kk]:
                        if f not in self.slot_of:
                            cand = (f, kk)
                            break
                    if cand:
                        break
                if cand is None:
                    break
                f, kk = cand
                must = (kk == k)
                urgent = (kk - k) <= p['urg']
                cost = p['cA'] if f[0] == 'A' else p['cB']
                ninstr = 2 if f[0] == 'A' else 1
                if not must:
                    if aux + ninstr > maxaux + (1 if (urgent and ninstr == 2 and aux == 1) else 0):
                        break
                    if credit < cost and not (urgent and credit > -4):
                        break
                free = [s for s in range(self.ns) if self.slot_frag[s] is None]
                if free:
                    s = free[0]
                else:
                    best, bu = None, -1
                    for s2 in range(self.ns):
                        nu = self.next_use(self.slot_frag[s2], k)
                        if nu > bu:
                            best, bu = s2, nu
                    if bu < (1 << 30):
                        if not (urgent and bu > kk):
                            if must:
                                raise RuntimeError("no slot")
                            break
                    s = best
                    del self.slot_of[self.slot_frag[s]]
                self.slot_frag[s] = f
                self.slot_of[f] = s
                n = self.emit_load(f)
                icount += n; aux += n
                for _ in range(n):
                    seq_slot.append(k)
                ds_seq += n
                load_seq[f] = ds_seq - 1
                credit -= cost
                nloads += 1
            fa, fb = self.need[k]
            lastseq = max(load_seq[fa], load_seq[fb])
            if lastseq >= done_upto:
                n_need = ds_seq - 1 - lastseq
                n_opp = sum(1 for s in seq_slot if s > k - p['safe'])
                n = min(n_need, n_opp) if k > 0 else n_need
                n = min(n, 15)
                a(f"s_waitcnt lgkmcnt({n})")
                icount += 1
                nwaits += 1
                done_upto = ds_seq - n
            t, i, r = self.order[k]
            acc = vr(self.ab + 4 * t, 4)
            srcc = "0" if first_of_tile[t] == k else acc
            a(f"v_mfma_f32_16x16x32_bf16 {acc}, {vr(self.reg(fa),4)}, {vr(self.reg(fb),4)}, {srcc}")
            icount += 1
            if last_of_tile[t] == k:
                pending_w.append((t, icount + 8))
        for (t, at) in sorted(pending_w, key=lambda x: x[1]):
            n = at - icount
            while n > 0:
                d = min(n, 16)
                a(f"s_nop {d-1}")
                icount += d
                n -= d
            a(f"ds_write_b128 {vr(self.vY)}, {vr(self.ab+4*t,4)} offset:{t*4096}")
            icount += 1
            if self.vF is not None:
                a(f"ds_write_b32 {vr(self.vF)}, {vr(self.vOne)} offset:{t*1024}")
                icount += 1
        return dict(loads=nloads, waits=nwaits, instrs=icount)


def order_v3(steps2=((7, 5), (6, 2), (4,), (3, 1)), steps3=((0,), (1, 3), (2,))):
    o = []
    for u in range(4):
        for r in range(8):
            for i in range(0, 4 - u):
                o.append((u + i, i, r))
    for st in steps2:
        for r in range(8):
            for u in st:
                for i in range(4):
                    t = u + i
                    if 4 <= t <= 7:
                        o.append((t, i, r))
    for st in steps3:
        for r in range(8):
            for u in st:
                for i in range(4, 8):
                    t = u + i
                    if t <= 7:
                        o.append((t, i, r))
    assert len(o) == 288 and len(set(o)) == 288
    return o


def order_v4():
    o = []
    for u in range(4):
        for r in range(8):
            for i in range(0, 4 - u):
                o.append((u + i, i, r))
    for tiles in ((4, 5), (6, 7)):
        for u in range(tiles[1], -1, -1):
            for r in range(8):
                for t in tiles:
                    i = t - u
                    if i >= 0:
                        o.append((t, i, r))
    assert len(o) == 288 and len(set(o)) == 288
    return o


def order_v5():
    o = []
    for u in range(4):
        for r in range(8):
            for i in range(0, 4 - u):
                o.append((u + i, i, r))
    for tiles in ((4,), (5, 6), (7,)):
        for u in range(tiles[-1], -1, -1):
            for r in range(8):
                for t in tiles:
                    i = t - u
                    if i >= 0:
                        o.append((t, i, r))
    assert len(o) == 288 and len(set(o)) == 288
    return o
```

```python
import sys
from gen import Asm, vr, sr, kernel_wrap, KA, KN, XKV_OFF, XQ_OFF, G_OFF, KCOPY, KUNIT, XUNIT, round_pair, stage_chunk_write
from gen_prep import fbits, zpow, dpp_reduce, L2E_HI, L2E_LO, LN2, TABROW, TABCH
from sched import Stream, order_v3, order_v4, order_v5

KBASE = 0
TBASE = 2 * KUNIT
R2 = 4 * KUNIT
XBASE = R2
YBASE = XBASE + 4 * XUNIT
FBASE = YBASE + 32768
TAB = R2
KTAB = TAB + 2 * TABCH
NBASE = KTAB + 2 * 1536
LDS_TOTAL = NBASE + 64
STAMP_OFF = 16 << 20
FL_OFF = 7 << 20


def gen_fused(name, st=0, scx="sc1", scl="sc1", stream_kw=None, pf=False, pfwave=7, hprio=0, order=3):
    a = Asm()
    st = int(st)

    def stamp(i):
        if st == 1 or (st > 1 and (st >> (i + 1)) & 1):
            a(f"s_memrealtime s[{76+2*i}:{77+2*i}]")

    def cmul2(d, x, y, ny):
        a(f"v_mul_f32 {vr(d)}, {vr(x)}, {vr(y)}")
        a(f"v_mul_f32 {vr(d+1)}, {vr(x)}, {vr(y+1)}")
        a(f"v_fmac_f32 {vr(d)}, {vr(x+1)}, {vr(ny)}")
        a(f"v_fmac_f32 {vr(d+1)}, {vr(x+1)}, {vr(y)}")

    def neg(d, s):
        a(f"v_xor_b32 {vr(d)}, 0x80000000, {vr(s)}")

    def wr_u(addr, x, row, t):
        a(f"v_cvt_pk_f16_f32 {vr(t)}, {vr(x)}, -{vr(x+1)}")
        a(f"ds_write_b32 {vr(addr)}, {vr(t)} offset:{row*TABROW}")

    def wr_v(addr, x, r, t):
        a(f"v_cvt_pk_f16_f32 {vr(t)}, {vr(x)}, {vr(x+1)}")
        a(f"ds_write_b32 {vr(addr)}, {vr(t)} offset:{(48+r)*TABROW}")

    def front_fix(vD, vT, vLds):
        for j in range(16):
            a(f"v_mov_b32 {vr(vT+j)}, 0")
        a(f"v_subrev_u32 {vr(vT+16)}, 32, {vr(vLds)}")
        a(f"v_lshlrev_b32 {vr(vT+7)}, 16, {vr(vD)}")
        a(f"v_mov_b32 {vr(vT+11)}, {vr(vD)}")
        a(f"v_lshlrev_b32 {vr(vT+14)}, 16, {vr(vD)}")
        a(f"v_alignbit_b32 {vr(vT+15)}, {vr(vD+1)}, {vr(vD)}, 16")
        for c in range(4):
            a(f"ds_write_b128 {vr(vT+16)}, {vr(vT,4)} offset:{c*KCOPY}")
        for c in range(4):
            a(f"ds_write_b128 {vr(vT+16)}, {vr(vT+4*c,4)} offset:{c*KCOPY+16}")

    def poll_guard(cnt_reg, lim, done):
        a(f"s_cmp_gt_u32 {cnt_reg}, {lim}")
        a(f"s_cbranch_scc1 {done}")

    def gather_addr():
        a("v_and_b32 v206, 255, v0")
        a("v_lshlrev_b32 v206, 3, v206")
        a("v_lshrrev_b32 v207, 8, v0")
        a(f"v_mul_u32_u24 v207, 1536, v207")
        a(f"v_add_u32 v207, {KTAB}, v207")
        a("v_mov_b32 v208, 127")
        for e in range(0, 12, 2):
            a(f"v_add_u32 v209, {e}, v206")
            a(f"v_add_u32 v210, {e+1}, v206")
            a("v_cvt_f32_u32 v211, v209")
            a("v_cvt_f32_u32 v212, v210")
            a("v_cvt_pk_bf16_f32 v211, v211, v212")
            a("v_and_b32 v212, 0xffff, v211")
            a("v_lshrrev_b32 v211, 16, v211")
            a("v_subrev_u32 v212, 17024, v212")
            a("v_subrev_u32 v211, 17024, v211")
            a("v_med3_i32 v212, v209, v208, v212")
            a("v_med3_i32 v211, v210, v208, v211")
            a(f"v_lshl_add_u32 v{140+e}, v212, 1, v207")
            a(f"v_lshl_add_u32 v{141+e}, v211, 1, v207")
        a("v_lshrrev_b32 v210, 8, v0")
        a(f"v_mul_u32_u24 v210, {KUNIT}, v210")
        a("v_and_b32 v211, 255, v0")
        a("v_lshl_add_u32 v210, v211, 4, v210")
        a(f"v_add_u32 v52, {KBASE+32+2*KUNIT}, v210")

    stamp(0)
    a("s_cmp_ge_u32 s2, 256")
    a("s_cbranch_scc1 L_end")
    a("s_load_dwordx8 s[4:11], s[0:1], 0")
    a("s_load_dwordx4 s[40:43], s[0:1], 32")
    a("s_load_dwordx16 s[16:31], s[0:1], 56")
    a("s_load_dwordx2 s[32:33], s[0:1], 120")
    a("s_load_dwordx4 s[36:39], s[0:1], 128")
    a("s_load_dwordx2 s[34:35], s[0:1], 144")
    a("v_lshrrev_b32 v1, 6, v0")
    a("v_and_b32 v2, 63, v0")
    a("v_readfirstlane_b32 s14, v1")
    a("s_and_b32 s12, s2, 7")
    a("s_lshr_b32 s13, s2, 3")
    a("s_lshl_b32 s15, s12, 5")
    a("s_add_u32 s15, s15, s13")
    a("s_lshl_b32 s66, s15, 2")
    a("v_lshlrev_b32 v53, 4, v2")
    if pf:
        a(f"s_cmp_lg_u32 s14, {pfwave}")
        a("s_cbranch_scc1 L_nopf")
        a("s_getpc_b64 s[98:99]")
        a.label("L_pc")
        a("v_lshlrev_b32 v200, 7, v2")
        a("v_mov_b32 v205, s99")
        a("v_add_u32 v201, 8192, v200")
        a("v_min_u32 v201, L_end-L_pc, v201")
        a("v_add_co_u32 v202, vcc, s98, v200")
        a("v_addc_co_u32 v203, vcc, 0, v205, vcc")
        a("v_add_co_u32 v204, vcc, s98, v201")
        a("v_addc_co_u32 v205, vcc, 0, v205, vcc")
        a("global_load_dword v214, v[202:203], off")
        a("global_load_dword v215, v[204:205], off")
        a.label("L_nopf")
    a("s_cmp_lt_u32 s14, 4")
    a("s_cbranch_scc1 L_Tfront")
    a("s_lshl_b32 s60, s12, 7")
    a("s_lshl_b32 s61, s13, 16")
    a("s_add_u32 s62, s60, s61")
    a("v_bfe_u32 v3, v0, 4, 4")
    a("v_and_b32 v54, 15, v0")
    a("v_lshlrev_b32 v55, 12, v3")
    a("v_lshlrev_b32 v56, 3, v54")
    a("v_add3_u32 v55, v55, v56, s62")
    a("v_subrev_u32 v56, 1024, v55")
    a("v_subrev_u32 v57, 2048, v55")
    a("v_subrev_u32 v58, 3072, v55")
    a("v_lshlrev_b32 v59, 5, v54")
    a("s_lshl_b32 s63, s12, 9")
    a("v_add_u32 v59, s63, v59")
    a("s_waitcnt lgkmcnt(0)")
    stamp(1)
    for (srd, p) in ((44, 4), (48, 6), (52, 8)):
        a(f"s_mov_b32 s{srd}, s{p}")
        a(f"s_mov_b32 s{srd+1}, s{p+1}")
        a(f"s_mov_b32 s{srd+2}, {2<<20}")
        a(f"s_mov_b32 s{srd+3}, 0x20000")
    a("buffer_load_dwordx2 v[12:13], v58, s[48:51], 0 offen")
    a("buffer_load_dwordx2 v[14:15], v57, s[48:51], 0 offen")
    a("buffer_load_dwordx2 v[16:17], v56, s[48:51], 0 offen")
    for j in range(4):
        a(f"buffer_load_dwordx2 v[{18+2*j}:{19+2*j}], v55, s[48:51], 0 offen offset:{1024*j}")
    a("global_load_dwordx4 v[34:37], v59, s[10:11]")
    a("global_load_dwordx4 v[38:41], v59, s[10:11] offset:16")
    for j in range(4):
        a(f"buffer_load_dwordx2 v[{26+2*j}:{27+2*j}], v55, s[52:55], 0 offen offset:{1024*j}")
    for j in range(4):
        a(f"buffer_load_dwordx2 v[{4+2*j}:{5+2*j}], v55, s[44:47], 0 offen offset:{1024*j}")
    a("s_load_dword s68, s[42:43], s66")
    a("s_load_dword s69, s[30:31], s66")
    a("v_lshlrev_b32 v60, 1, v3")
    a("v_sub_u32 v60, 30, v60")
    a("v_lshrrev_b32 v61, 2, v60")
    a("v_and_b32 v62, 7, v54")
    a("v_xor_b32 v61, v61, v62")
    a("v_lshlrev_b32 v61, 4, v61")
    a("v_and_b32 v60, 3, v60")
    a("v_lshl_add_u32 v61, v60, 2, v61")
    a("v_lshl_add_u32 v42, v54, 9, v61")
    a(f"v_add_u32 v42, {TBASE}, v42")
    a("v_bfe_u32 v60, v0, 3, 5")
    a("v_and_b32 v61, 7, v0")
    a("v_lshrrev_b32 v62, 2, v60")
    a("v_xor_b32 v62, v61, v62")
    a("v_lshlrev_b32 v62, 4, v62")
    a("v_lshl_add_u32 v43, v60, 7, v62")
    a(f"v_add_u32 v43, {TBASE}, v43")
    a("v_lshlrev_b32 v60, 12, v60")
    a("v_lshl_add_u32 v44, v61, 4, v60")
    a("s_lshl_b32 s61, s12, 18")
    a("s_lshl_b32 s3, s13, 7")
    a("s_sub_u32 s61, s61, s3")
    a("s_add_u32 s61, s61, 3968")
    a("v_add_u32 v44, s61, v44")
    a("v_add_u32 v45, 0x20000, v44")
    a(f"s_add_u32 s70, s34, {XKV_OFF}")
    a("s_addc_u32 s71, s35, 0")
    a(f"s_add_u32 s72, s34, {XQ_OFF}")
    a("s_addc_u32 s73, s35, 0")
    a("s_lshl_b32 s61, s15, 13")
    a("s_add_u32 s56, s40, s61")
    a("s_addc_u32 s57, s41, 0")
    a("s_mov_b32 s58, 8192")
    a("s_mov_b32 s59, 0x20000")
    a("v_and_b32 v46, 255, v0")
    a("v_lshlrev_b32 v46, 4, v46")
    a("v_add_u32 v47, 4096, v46")
    a(f"v_add_u32 v48, {KBASE+32}, v46")
    a(f"v_add_u32 v49, {KUNIT}, v48")
    gather_addr()
    a("s_mov_b32 s62, 0x05040100")
    a("s_mov_b32 s63, 0x07060302")
    KU, W, AC, VU = 60, 88, 104, 120
    a("s_waitcnt vmcnt(10)")
    for row in range(7):
        for e in range(2):
            src = 12 + 2 * row + e
            a(f"v_lshlrev_b32 v{KU+4*row+2*e}, 16, v{src}")
            a(f"v_and_b32 v{KU+4*row+2*e+1}, 0xffff0000, v{src}")
    a("s_waitcnt vmcnt(8)")
    for e in range(2):
        s0, s1, s2_, s3 = 34 + 4 * e, 35 + 4 * e, 36 + 4 * e, 37 + 4 * e
        a(f"v_lshlrev_b32 v{W+0+2*e}, 16, v{s0}")
        a(f"v_lshlrev_b32 v{W+0+2*e+1}, 16, v{s2_}")
        a(f"v_and_b32 v{W+4+2*e}, 0xffff0000, v{s0}")
        a(f"v_and_b32 v{W+4+2*e+1}, 0xffff0000, v{s2_}")
        a(f"v_lshlrev_b32 v{W+8+2*e}, 16, v{s1}")
        a(f"v_lshlrev_b32 v{W+8+2*e+1}, 16, v{s3}")
        a(f"v_and_b32 v{W+12+2*e}, 0xffff0000, v{s1}")
        a(f"v_and_b32 v{W+12+2*e+1}, 0xffff0000, v{s3}")
    chains = [(row, e) for row in range(4) for e in range(2)]
    def acc(row, e): return AC + 4 * row + 2 * e
    for (row, e) in chains:
        a(f"v_pk_mul_f32 {vr(acc(row,e),2)}, {vr(KU+4*(row+0)+2*e,2)}, {vr(W+12+2*e,2)}")
    for j in (2, 1, 0):
        for (row, e) in chains:
            a(f"v_pk_fma_f32 {vr(acc(row,e),2)}, {vr(KU+4*(row+3-j)+2*e,2)}, {vr(W+4*j+2*e,2)}, {vr(acc(row,e),2)}")
    a("s_waitcnt vmcnt(4)")
    stamp(2)
    for row in range(4):
        for e in range(2):
            src = 26 + 2 * row + e
            a(f"v_lshlrev_b32 v{VU+4*row+2*e}, 16, v{src}")
            a(f"v_and_b32 v{VU+4*row+2*e+1}, 0xffff0000, v{src}")
    for (row, e) in chains:
        a(f"v_pk_mul_f32 {vr(acc(row,e),2)}, {vr(acc(row,e),2)}, {vr(VU+4*row+2*e,2)}")
    for j in range(4):
        e, x = j >> 1, j & 1
        a(f"v_cvt_pk_bf16_f32 v{60+2*j}, v{acc(3,e)+x}, v{acc(2,e)+x}")
        a(f"v_cvt_pk_bf16_f32 v{61+2*j}, v{acc(1,e)+x}, v{acc(0,e)+x}")
    for j in range(4):
        a(f"ds_write_b64 v42, v[{60+2*j}:{61+2*j}] offset:{j*128}")
    a("s_waitcnt vmcnt(0)")
    for j in range(4):
        e, x = j >> 1, j & 1
        a(f"v_perm_b32 v{68+2*j}, v{4+2*2+e}, v{4+2*3+e}, s{62+x}")
        a(f"v_perm_b32 v{69+2*j}, v{4+2*0+e}, v{4+2*1+e}, s{62+x}")
    for j in range(4):
        a(f"ds_write_b64 v42, v[{68+2*j}:{69+2*j}] offset:{8192 + j*128}")
    a("s_waitcnt lgkmcnt(0)")
    a("s_barrier")
    stamp(3)
    a("ds_read_b128 v[112:115], v43")
    a("ds_read_b128 v[116:119], v43 offset:8192")
    a("ds_read_b128 v[120:123], v43 offset:4096")
    a("ds_read_b128 v[124:127], v43 offset:12288")
    a("s_waitcnt lgkmcnt(3)")
    a(f"global_store_dwordx4 v44, v[112:115], s[70:71] {scx}")
    a("s_waitcnt lgkmcnt(2)")
    a(f"global_store_dwordx4 v44, v[116:119], s[72:73] {scx}")
    a("s_waitcnt lgkmcnt(1)")
    a(f"global_store_dwordx4 v45, v[120:123], s[70:71] {scx}")
    a("s_waitcnt lgkmcnt(0)")
    a(f"global_store_dwordx4 v45, v[124:127], s[72:73] {scx}")
    a("buffer_load_dwordx4 v[20:23], v46, s[56:59], 0 offen")
    a("buffer_load_dwordx2 v[24:25], v46, s[56:59], 0 offen offset:16")
    a("buffer_load_dwordx4 v[32:35], v47, s[56:59], 0 offen")
    a("buffer_load_dwordx2 v[36:37], v47, s[56:59], 0 offen offset:16")
    stamp(4)
    a("s_branch L_front_done")

    a.label("L_Tfront")
    a("s_memrealtime s[70:71]")
    a("s_and_b32 s64, s14, 1")
    a("s_lshr_b32 s65, s14, 1")
    for j in range(40, 50):
        a(f"v_mov_b32 v{j}, 0")
    a("s_lshl_b32 s61, s15, 1")
    a("s_add_u32 s61, s61, s64")
    a("s_lshl_b32 s61, s61, 8")
    a("s_lshl_b32 s3, s65, 7")
    a("v_lshlrev_b32 v68, 1, v2")
    a("v_add_u32 v69, s61, v68")
    a("v_add_u32 v68, s3, v69")
    a("v_xor_b32 v69, 128, v68")
    a("s_lshl_b32 s60, s2, 3")
    a("s_lshl_b32 s3, s14, 1")
    a("s_add_u32 s60, s60, s3")
    a("s_lshl_b32 s3, s60, 10")
    a("v_add_u32 v54, s3, v53")
    a("s_waitcnt lgkmcnt(0)")
    stamp(1)
    a("s_load_dword s67, s[28:29], s66")
    for j, p in enumerate((16, 18, 20, 22, 24, 26)):
        a(f"global_load_short_d16_hi v{40+j}, v68, s[{p}:{p+1}]")
    for j, p in enumerate((20, 22, 24, 26)):
        a(f"global_load_short_d16_hi v{46+j}, v69, s[{p}:{p+1}]")
    a("s_or_b32 s3, s2, s14")
    a("s_cmp_lg_u32 s3, 0")
    a("s_cbranch_scc1 L_nononce")
    a("s_memrealtime s[56:57]")
    a("v_mov_b32 v136, 0")
    a("s_waitcnt lgkmcnt(0)")
    a("s_or_b32 s56, s56, 1")
    a("v_mov_b32 v137, s56")
    a("s_mov_b64 exec, 1")
    a("global_store_dword v136, v137, s[38:39] sc1")
    a("s_mov_b64 exec, -1")
    a.label("L_nononce")
    gather_addr()
    a("s_waitcnt vmcnt(0) lgkmcnt(0)")
    stamp(2)
    a("s_cmp_lg_u32 s14, 1")
    a("s_cbranch_scc1 L_nn0")
    a("v_mov_b32 v136, 0")
    a("global_load_dword v137, v136, s[38:39] sc1")
    a.label("L_nn0")
    a("s_lshl_b32 s3, s67, 16")
    a("s_and_b32 s61, s67, 0xffff0000")
    a("s_cmp_eq_u32 s64, 0")
    a("s_cselect_b32 s3, s3, s61")
    a("v_mov_b32 v60, s3")
    a(f"v_mul_f32 v61, 0x{L2E_HI:08x}, v60")
    a(f"s_mov_b32 s61, 0x{L2E_HI:08x}")
    a("v_fma_f32 v62, v60, s61, -v61")
    a(f"v_mov_b32 v63, 0x{L2E_LO:08x}")
    a("v_fmac_f32 v62, v60, v63")
    a("v_exp_f32 v61, v61")
    a(f"v_mul_f32 v62, 0x{LN2:08x}, v62")
    a("v_fma_f32 v61, v61, v62, v61")
    a("v_cvt_pk_bf16_f32 v61, v61, v61")
    a("v_and_b32 v61, 0xffff0000, v61")
    a("v_mul_f32 v62, v61, v40")
    a("v_mul_f32 v63, v61, v41")
    a(f"v_mul_f32 v62, 0x{L2E_HI:08x}, v62")
    a("v_mul_f32 v63, 0.15915494, v63")
    for (dst, b, cc) in ((64, 42, 44), (66, 46, 48)):
        a(f"v_mul_f32 v68, v61, v{b}")
        a(f"v_mul_f32 v69, v61, v{b+1}")
        neg(70, 69)
        cmul2(dst, cc, 68, 70)
    a("v_max_f32 v68, |v64|, |v65|")
    a("v_max3_f32 v68, |v66|, |v67|, v68")
    zpow(a, 74, 75, 62, 63, 128, 70, 71)
    dpp_reduce(a, "v_max_f32", 68)
    neg(76, 75)
    a("v_readlane_b32 s74, v68, 63")
    a(f"s_mul_i32 s75, s64, {TABCH}")
    a(f"s_max_u32 s74, s74, {fbits(1e-30)}")
    a("v_mov_b32 v68, s74")
    a("v_rcp_f32 v69, v68")
    a(f"s_add_u32 s75, s75, {TAB}")
    a("s_lshl_b32 s3, s65, 8")
    a("s_add_u32 s3, s3, s75")
    a("v_mul_f32 v64, v64, v69")
    a("v_mul_f32 v65, v65, v69")
    a("v_lshlrev_b32 v72, 2, v2")
    a("v_add_u32 v72, s3, v72")
    a("s_lshl_b32 s3, s64, 2")
    a(f"s_add_u32 s3, s3, {NBASE+4}")
    a("v_mov_b32 v69, s3")
    a("ds_write_b32 v69, v68")
    grow = {0: 0, 1: 8, 2: 16, 3: 20, 4: 24, 5: 26, 6: 28, 7: 30}
    for h in range(8, 17):
        grow[h] = 32 + h - 8
    zpow(a, 78, 79, 62, 63, 8, 70, 71)
    neg(80, 79)
    ZB = 100
    def Z(d): return ZB + 4 * (d - 1)
    zpow(a, Z(1), Z(1) + 1, 62, 63, 1, 70, 71)
    neg(Z(1) + 2, Z(1) + 1)
    for (d, x, y) in ((2, 1, 1), (3, 2, 1), (4, 2, 2), (5, 4, 1), (6, 4, 2), (7, 4, 3)):
        cmul2(Z(d), Z(x), Z(y), Z(y) + 2)
        neg(Z(d) + 2, Z(d) + 1)
    a("v_mov_b32 v82, 1.0")
    a("v_mov_b32 v83, 0")
    wr_v(72, 82, 0, 73)
    wr_v(72, 78, 1, 77)
    cv, cg = 78, 64
    tog = 0
    for h in range(0, 17):
        if h > 0:
            ng = 86 if cg != 86 else 88
            cmul2(ng, cg, 74, 76)
            cg = ng
        if 1 <= h <= 14:
            nv = 82 if cv != 82 else 84
            cmul2(nv, cv, 78, 80)
            cv = nv
        wr_u(72, cg, grow[h], 73)
        if 1 <= h <= 14:
            wr_v(72, cv, h + 1, 77)
        if h < 2:
            ds = [(d, grow[h] + d) for d in range(1, 8)]
        elif h < 4:
            ds = [(2, grow[h] + 1), (4, grow[h] + 2), (6, grow[h] + 3)]
        elif h < 8:
            ds = [(4, grow[h] + 1)]
        else:
            ds = []
        for (d, row) in ds:
            dst = 90 + 2 * tog
            cmul2(dst, cg, Z(d), Z(d) + 2)
            wr_u(72, dst, row, 94 + tog)
            tog ^= 1
    a("s_cmp_lg_u32 s14, 1")
    a("s_cbranch_scc1 L_nonce_done")
    a("v_mov_b32 v136, 0")
    a("s_mov_b32 s28, 0")
    a("s_waitcnt vmcnt(0)")
    a.label("L_nonce_poll")
    a("v_readfirstlane_b32 s3, v137")
    a("s_add_u32 s28, s28, 1")
    poll_guard("s28", "0x100000", "L_nonce_got")
    a("s_cmp_eq_u32 s3, 0")
    a("s_cbranch_scc1 L_nonce_retry")
    a("s_sub_i32 s61, s70, s3")
    a("s_cmp_lt_i32 s61, 500")
    a("s_cbranch_scc1 L_nonce_got")
    a("s_cmp_gt_u32 s28, 24")
    a("s_cbranch_scc1 L_nonce_got")
    a.label("L_nonce_retry")
    a("global_load_dword v137, v136, s[38:39] sc1")
    a("s_waitcnt vmcnt(0)")
    a("s_branch L_nonce_poll")
    a.label("L_nonce_got")
    a(f"v_mov_b32 v136, {NBASE}")
    a("ds_write_b32 v136, v137")
    a.label("L_nonce_done")
    stamp(3)
    a("s_waitcnt lgkmcnt(0)")
    a("s_barrier")
    stamp(4)
    a("global_load_dwordx4 v[4:7], v54, s[4:5]")
    a("global_load_dwordx4 v[8:11], v54, s[4:5] offset:1024")
    a("global_load_dwordx4 v[12:15], v53, s[32:33]")

    a.label("L_front_done")
    a(f"v_mov_b32 v135, {NBASE}")
    a("ds_read_b96 v[132:134], v135")
    a("s_cmp_ge_u32 s14, 6")
    a("s_cbranch_scc1 L_jobdone")
    a("s_and_b32 s64, s14, 1")
    a("s_lshr_b32 s3, s14, 1")
    a(f"s_mul_i32 s75, s64, {TABCH}")
    a(f"s_add_u32 s75, s75, {TAB}")
    a("v_and_b32 v60, 15, v2")
    a("v_lshrrev_b32 v61, 4, v2")
    a(f"v_mul_u32_u24 v62, {TABROW}, v60")
    a("v_lshl_add_u32 v62, v61, 4, v62")
    a("v_add_u32 v62, s75, v62")
    a(f"s_mul_i32 s61, s3, {16*TABROW}")
    a("v_add_u32 v63, s61, v62")
    for kk in range(8):
        a(f"ds_read_b128 {vr(80+4*kk,4)}, v63 offset:{64*kk}")
        a(f"ds_read_b128 {vr(168+4*kk,4)}, v62 offset:{48*TABROW + 64*kk}")
    for kk in range(8):
        a(f"s_waitcnt lgkmcnt({14-2*kk})")
        if kk == 0:
            a("v_readfirstlane_b32 s74, v133")
            a("v_readfirstlane_b32 s75, v134")
        srcc = "0" if kk == 0 else "v[64:67]"
        a(f"v_mfma_f32_16x16x32_f16 v[64:67], {vr(80+4*kk,4)}, {vr(168+4*kk,4)}, {srcc}")
    a("s_cmp_eq_u32 s64, 0")
    a("s_cselect_b32 s74, s74, s75")
    a("s_mul_i32 s61, s64, 1536")
    a(f"s_add_u32 s61, s61, {KTAB}")
    a("s_nop 5")
    for r in range(4):
        a(f"v_mul_f32 v{64+r}, s74, v{64+r}")
    a("v_cvt_pk_bf16_f32 v68, v64, v65")
    a("v_cvt_pk_bf16_f32 v69, v66, v67")
    a("s_cmp_eq_u32 s3, 1")
    a("s_cbranch_scc1 L_job1")
    a("s_cmp_eq_u32 s3, 2")
    a("s_cbranch_scc1 L_job2")
    a("v_lshrrev_b32 v70, 1, v61")
    a("v_lshlrev_b32 v70, 8, v70")
    a("v_lshl_add_u32 v70, v60, 4, v70")
    a("v_and_b32 v71, 1, v61")
    a("v_lshl_add_u32 v70, v71, 3, v70")
    a("v_add_u32 v70, s61, v70")
    a("ds_write_b64 v70, v[68:69]")
    a("s_branch L_jobdone")
    a.label("L_job1")
    a("v_lshlrev_b32 v70, 7, v61")
    a("v_lshl_add_u32 v71, v60, 3, v70")
    a("v_lshl_add_u32 v72, v60, 2, v70")
    a("v_cmp_gt_u32 vcc, 2, v61")
    a("v_mov_b32 v73, 64")
    a("s_nop 1")
    a("v_cndmask_b32 v70, v72, v71, vcc")
    a("v_cndmask_b32 v73, v73, 4, vcc")
    a("v_add_u32 v70, s61, v70")
    a("v_add_u32 v73, v70, v73")
    a("ds_write_b32 v70, v68 offset:512")
    a("ds_write_b32 v73, v69 offset:512")
    a("s_branch L_jobdone")
    a.label("L_job2")
    a("v_lshlrev_b32 v70, 7, v61")
    a("v_lshl_add_u32 v70, v60, 1, v70")
    a("v_add_u32 v70, s61, v70")
    a("ds_write_b16 v70, v68 offset:1024")
    a("ds_write_b16_d16_hi v70, v68 offset:1056")
    a("ds_write_b16 v70, v69 offset:1088")
    a("ds_write_b16_d16_hi v70, v69 offset:1120")
    a.label("L_jobdone")
    a("s_waitcnt lgkmcnt(0)")
    a("v_readfirstlane_b32 s27, v132")
    a("s_barrier")
    stamp(5)
    for e in range(0, 12, 2):
        a(f"ds_read_u16 v{60+e//2}, v{140+e}")
        a(f"ds_read_u16_d16_hi v{68+e//2}, v{141+e}")
    a("s_and_b32 s20, s14, 3")
    a(f"s_mul_i32 s21, s20, {XUNIT}")
    a(f"s_add_u32 s21, s21, {XBASE}")
    a("s_and_b32 s3, s20, 1")
    a("s_lshl_b32 s61, s15, 1")
    a("s_add_u32 s61, s61, s3")
    a("s_lshl_b32 s61, s61, 12")
    a("s_lshr_b32 s3, s20, 1")
    a("s_cmp_eq_u32 s3, 0")
    a(f"s_cselect_b32 s3, {XKV_OFF}, {XQ_OFF}")
    a("s_add_u32 s61, s61, s3")
    a("s_lshr_b32 s3, s14, 2")
    a("s_lshl_b32 s3, s3, 11")
    a("s_add_u32 s61, s61, s3")
    a("s_add_u32 s22, s34, s61")
    a("s_addc_u32 s23, s35, 0")
    a("s_add_u32 s24, s21, s3")
    a("s_waitcnt lgkmcnt(0)")
    for e in range(6):
        a(f"v_and_b32 v{68+e}, 0xffff0000, v{68+e}")
        a(f"v_or_b32 v{60+e}, v{60+e}, v{68+e}")
    stage_chunk_write(a, 60, 80, 52)
    a("s_cmp_lg_u32 s20, 0")
    a("s_cbranch_scc1 L_nofront2")
    a("s_mov_b64 exec, 1")
    front_fix(60, 92, 52)
    a("s_mov_b64 exec, -1")
    a.label("L_nofront2")
    a("s_cmp_lt_u32 s14, 4")
    a("s_cbranch_scc1 L_Tmid")
    a("s_lshl_b32 s3, s2, 7")
    a("s_lshl_b32 s61, s14, 2")
    a("s_add_u32 s3, s3, s61")
    a(f"s_add_u32 s3, s3, {FL_OFF-16}")
    a("v_mov_b32 v134, s3")
    a("v_mov_b32 v135, s27")
    a("s_waitcnt vmcnt(4)")
    stamp(10)
    a("s_mov_b64 exec, 1")
    a("global_store_dword v134, v135, s[34:35] sc1")
    a("s_mov_b64 exec, -1")
    a("s_waitcnt vmcnt(3)")
    stage_chunk_write(a, 20, 112, 48)
    a("s_waitcnt vmcnt(1)")
    stage_chunk_write(a, 32, 124, 49)
    a("s_cmp_lg_u32 s14, 4")
    a("s_cbranch_scc1 L_nofront1")
    a("s_mov_b64 exec, 1")
    front_fix(20, 152, 48)
    front_fix(32, 172, 49)
    a("s_mov_b64 exec, -1")
    a.label("L_nofront1")
    a("s_sub_u32 s26, s14, 4")
    a("v_lshlrev_b32 v67, 8, v2")
    a(f"v_add_u32 v67, {FBASE}, v67")
    a("v_mov_b32 v72, 0")
    a("s_mov_b32 exec_hi, 0")
    a("ds_write_b32 v67, v72")
    a("s_mov_b64 exec, -1")
    a("s_lshl_b32 s3, s26, 6")
    a("v_add_u32 v10, s3, v2")
    a("v_lshrrev_b32 v11, 4, v10")
    a("v_bfe_u32 v12, v10, 2, 2")
    a("v_lshlrev_b32 v13, 1, v12")
    a("v_xor_b32 v11, v11, v13")
    a("v_lshlrev_b32 v11, 4, v11")
    a("v_lshl_add_u32 v11, v12, 8, v11")
    a("v_and_b32 v12, 3, v10")
    a("v_lshl_add_u32 v11, v12, 2, v11")
    a(f"v_add_u32 v12, {YBASE}, v11")
    a("v_lshlrev_b32 v13, 3, v10")
    a(f"v_add_u32 v13, {G_OFF}, v13")
    a("v_lshlrev_b32 v14, 1, v10")
    a(f"v_sub_u32 v14, {XBASE + 4094 - 3584}, v14")
    a("v_lshlrev_b32 v15, 10, v10")
    a("s_lshl_b32 s3, s15, 2")
    a("v_add_u32 v15, s3, v15")
    a("v_and_b32 v9, 3, v2")
    a("v_lshlrev_b32 v9, 8, v9")
    a(f"v_add_u32 v9, {FBASE}, v9")
    a("v_add_u32 v1, s24, v53")
    a("v_mov_b32 v7, v53")
    a("v_and_b32 v16, 31, v2")
    a("v_lshlrev_b32 v16, 10, v16")
    a("s_lshl_b32 s3, s12, 7")
    a(f"s_add_u32 s3, s3, {FL_OFF}")
    a("v_add_u32 v16, s3, v16")
    a("s_cmp_lg_u32 s14, 4")
    a("s_cbranch_scc1 L_nopoll0")
    a("s_mov_b32 exec_hi, 0")
    a("global_load_dwordx4 v[100:103], v16, s[34:35] sc1")
    a("s_mov_b64 exec, -1")
    a.label("L_nopoll0")
    stamp(6)
    a("s_waitcnt lgkmcnt(0)")
    a("s_branch L_mid_done")
    a.label("L_Tmid")
    a("s_waitcnt vmcnt(0)")
    for e in range(4):
        a(f"v_lshlrev_b32 v{60+2*e}, 16, v{12+e}")
        a(f"v_and_b32 v{61+2*e}, 0xffff0000, v{12+e}")
    for rr in range(2):
        B = 68 + 8 * rr
        for e in range(4):
            a(f"v_lshlrev_b32 v{B+2*e}, 16, v{4+4*rr+e}")
            a(f"v_and_b32 v{B+2*e+1}, 0xffff0000, v{4+4*rr+e}")
    for rr in range(2):
        B = 68 + 8 * rr
        for e in range(8):
            a(f"v_mul_f32 v{B+e}, v{B+e}, v{60+e}")
    for rr in range(2):
        B = 68 + 8 * rr
        for e in range(4):
            round_pair(a, B + 2 * e, B + 2 * e, 84 + e)
    for rr in range(2):
        B = 68 + 8 * rr
        for (x, y) in ((0, 1), (2, 3), (4, 5), (6, 7), (0, 2), (4, 6), (0, 4)):
            a(f"v_add_f32 v{B+x}, v{B+x}, v{B+y}")
    for sh in (1, 2, 4, 8):
        a("s_nop 0")
        for B in (68, 76):
            a(f"v_add_f32_dpp v{B}, v{B}, v{B} row_shr:{sh} row_mask:0xf bank_mask:0xf bound_ctrl:0")
    a("s_nop 0")
    for B in (68, 76):
        a(f"v_add_f32_dpp v{B}, v{B}, v{B} row_bcast:15 row_mask:0xa bank_mask:0xf")
    a("s_nop 0")
    for B in (68, 76):
        a(f"v_add_f32_dpp v{B}, v{B}, v{B} row_bcast:31 row_mask:0xc bank_mask:0xf")
    a("v_cvt_pk_bf16_f32 v68, v68, v76")
    a("v_and_b32 v76, 0xffff0000, v68")
    a("v_lshlrev_b32 v68, 16, v68")
    for B in (68, 76):
        a(f"v_mul_f32 v{B}, {fbits(-1.4426950408889634)}, v{B}")
    for B in (68, 76):
        a(f"v_exp_f32 v{B}, v{B}")
    a("s_nop 0")
    for B in (68, 76):
        a(f"v_add_f32 v{B}, 1.0, v{B}")
    for B in (68, 76):
        a(f"v_rcp_f32 v{B}, v{B}")
    a("s_nop 0")
    a("v_cvt_pk_bf16_f32 v68, v68, v76")
    a("v_and_b32 v18, 0xffff0000, v68")
    a("v_lshlrev_b32 v16, 16, v68")
    a("s_lshl_b32 s3, s60, 3")
    a(f"s_add_u32 s3, s3, {G_OFF}")
    a("v_mov_b32 v62, s3")
    a("v_mov_b32 v17, s27")
    a("v_mov_b32 v19, s27")
    a("s_mov_b32 exec_lo, 0")
    a("s_mov_b32 exec_hi, 0x80000000")
    a("global_store_dwordx2 v62, v[16:17], s[34:35] sc1")
    a("global_store_dwordx2 v62, v[18:19], s[34:35] offset:8 sc1")
    a("s_mov_b64 exec, -1")
    for j in range(4):
        a(f"v_mov_b32 v{72+j}, 0")
    a("v_add_u32 v67, s21, v53")
    a("s_mov_b32 exec_hi, 0")
    a("ds_write_b128 v67, v[72:75] offset:4096")
    a("s_mov_b64 exec, -1")
    a(f"s_mul_i32 s25, s20, {KUNIT}")
    a("v_and_b32 v31, 15, v2")
    a("v_lshrrev_b32 v32, 4, v2")
    a("v_add_u32 v33, 1, v31")
    a("v_and_b32 v34, 3, v33")
    a("v_lshrrev_b32 v33, 2, v33")
    a(f"v_mul_u32_u24 v34, {KCOPY}, v34")
    a("v_lshlrev_b32 v33, 3, v33")
    a("v_lshlrev_b32 v35, 4, v32")
    a("v_add3_u32 v34, v34, v33, v35")
    a("v_add_u32 v4, s25, v34")
    a("v_sub_u32 v33, 15, v31")
    a("v_lshlrev_b32 v33, 5, v33")
    a("v_add3_u32 v5, v33, v35, s21")
    a("v_lshlrev_b32 v33, 1, v32")
    a("v_xor_b32 v33, v31, v33")
    a("v_lshlrev_b32 v33, 4, v33")
    a("v_lshl_add_u32 v33, v32, 8, v33")
    a("s_lshl_b32 s3, s20, 10")
    a(f"s_add_u32 s3, s3, {YBASE}")
    a("v_add_u32 v6, s3, v33")
    a("s_lshl_b32 s3, s20, 8")
    a(f"s_add_u32 s3, s3, {FBASE}")
    a("v_lshlrev_b32 v3, 2, v2")
    a("v_add_u32 v3, s3, v3")
    a("v_add_u32 v1, s24, v53")
    a("v_mov_b32 v7, v53")
    a("v_mov_b32 v0, 1")
    stamp(6)
    a("s_waitcnt lgkmcnt(0)")
    a.label("L_mid_done")
    a(f"v_mov_b32 v136, {NBASE}")
    a("s_barrier")
    stamp(7)
    a("s_cmp_ge_u32 s14, 4")
    a("s_cbranch_scc1 L_helper_go")
    kw = dict(credit_per_slot=3.5, horizon=80, safe_slots=12)
    kw.update(stream_kw or {})
    strm = Stream(a, {3: order_v3(steps3=((0,), (1,), (2,), (3,))), 4: order_v4(), 5: order_v5()}[int(order)], 4, 5, 6, frag_base=40, nslots=54, acc_base=8,
                  preload=[('A', m) for m in range(32)], vF=3, vOne=0, **kw)
    strm.emit_preload()
    a("s_barrier")
    stamp(8)
    a(f"global_load_dwordx4 v[8:11], v7, s[22:23] {scl}")
    a(f"global_load_dwordx4 v[12:15], v7, s[22:23] offset:1024 {scl}")
    a("s_waitcnt vmcnt(1)")
    a("ds_write_b128 v1, v[8:11]")
    a("s_waitcnt vmcnt(0)")
    a("ds_write_b128 v1, v[12:15] offset:1024")
    a("s_waitcnt lgkmcnt(0)")
    a("s_barrier")
    stamp(9)
    info = strm.run()
    sys.stderr.write(f"stream: {info}\n")
    stamp(10)
    a("s_branch L_fin")

    a.label("L_helper_go")
    for j in range(20, 24):
        a(f"v_mov_b32 v{j}, 0")
    a("s_lshl_b32 s3, s68, 16")
    a("v_mov_b32 v24, s3")
    a("s_and_b32 s3, s68, 0xffff0000")
    a("v_mov_b32 v25, s3")
    a("s_lshl_b32 s3, s69, 16")
    a("v_mov_b32 v26, s3")
    a("s_and_b32 s3, s69, 0xffff0000")
    a("v_mov_b32 v27, s3")
    a("s_cmp_lg_u32 s14, 4")
    a("s_cbranch_scc1 L_gload")
    a("s_mov_b32 s28, 0")
    a("s_mov_b32 exec_hi, 0")
    a("global_load_dwordx4 v[104:107], v16, s[34:35] sc1")
    a.label("L_poll1")
    a("s_waitcnt vmcnt(1)")
    for (R, nxt) in ((100, None),):
        pass
    def chk(R):
        a(f"v_xor_b32 v108, s27, v{R}")
        a(f"v_xor_b32 v109, s27, v{R+1}")
        a(f"v_xor_b32 v110, s27, v{R+2}")
        a(f"v_xor_b32 v111, s27, v{R+3}")
        a("v_or3_b32 v108, v108, v109, v110")
        a("v_or_b32 v108, v108, v111")
        a("v_cmp_ne_u32 vcc, 0, v108")
    chk(100)
    a("s_add_u32 s28, s28, 1")
    poll_guard("s28", "0x100000", "L_poll1_done")
    a("s_cbranch_vccz L_poll1_done")
    a("global_load_dwordx4 v[100:103], v16, s[34:35] sc1")
    a("s_waitcnt vmcnt(1)")
    chk(104)
    a("s_cbranch_vccz L_poll1_done")
    a("global_load_dwordx4 v[104:107], v16, s[34:35] sc1")
    a("s_branch L_poll1")
    a.label("L_poll1_done")
    a("s_mov_b64 exec, -1")
    a.label("L_gload")
    a("s_barrier")
    stamp(8)
    a(f"global_load_dwordx4 v[40:43], v7, s[22:23] {scl}")
    a(f"global_load_dwordx4 v[44:47], v7, s[22:23] offset:1024 {scl}")
    for t in range(8):
        a(f"v_add_u32 v16, {t*2048}, v13")
        a(f"global_load_dwordx2 v[{48+2*t}:{49+2*t}], v16, s[34:35] sc1")
    a("s_waitcnt vmcnt(9)")
    a("ds_write_b128 v1, v[40:43]")
    a("s_waitcnt vmcnt(8)")
    a("ds_write_b128 v1, v[44:47] offset:1024")
    a("s_waitcnt lgkmcnt(0)")
    a("s_barrier")
    stamp(9)
    if int(hprio):
        a(f"s_setprio {int(hprio)}")
    a("s_waitcnt vmcnt(0)")
    a("s_mov_b32 s28, 0")
    a.label("L_poll2")
    a("v_xor_b32 v17, s27, v49")
    for t in range(1, 8):
        a(f"v_xor_b32 v16, s27, v{49+2*t}")
        a("v_or_b32 v17, v17, v16")
    a("v_cmp_ne_u32 vcc, 0, v17")
    a("s_add_u32 s28, s28, 1")
    poll_guard("s28", "0x100000", "L_poll2_done")
    a("s_cbranch_vccz L_poll2_done")
    for t in range(8):
        a(f"v_add_u32 v16, {t*2048}, v13")
        a(f"global_load_dwordx2 v[{48+2*t}:{49+2*t}], v16, s[34:35] sc1")
    a("s_waitcnt vmcnt(0)")
    a("s_branch L_poll2")
    a.label("L_poll2_done")
    PB = 64
    def PW(t): return PB + 8 * t
    for t in range(8):
        for j in range(4):
            a(f"v_mov_b32 v{128+4*t+j}, 0")
    def prework(tt):
        R = 128 + 4 * tt
        P = PW(tt)
        a(f"v_mul_f32 v{P+2}, v{R+2}, v26")
        a(f"v_mul_f32 v{P+3}, v{R+3}, v27")
        a(f"v_sub_f32 v{P+4}, 1.0, v{48+2*tt}")
        a(f"v_mul_f32 v{P}, v{R+2}, v{48+2*tt}")
        a(f"v_mul_f32 v{P+1}, v{R+3}, v{48+2*tt}")
        round_pair(a, P + 2, P + 2, 41)
        a(f"v_cvt_pk_bf16_f32 v42, v{P+4}, v{P+4}")
        a(f"v_and_b32 v{P+4}, 0xffff0000, v42")
    for t in range(8):
        xo = (7 - t) * 512
        R = 128 + 4 * t
        a(f"ds_read_u16_d16_hi v{R}, v14 offset:{xo}")
        a(f"ds_read_u16_d16_hi v{R+1}, v14 offset:{xo+XUNIT}")
        a(f"ds_read_u16_d16_hi v{R+2}, v14 offset:{xo+2*XUNIT}")
        a(f"ds_read_u16_d16_hi v{R+3}, v14 offset:{xo+3*XUNIT}")
    a("s_waitcnt lgkmcnt(0)")
    prework(0); prework(1)
    for t in range(8):
        P = PW(t)
        R = 128 + 4 * t
        a("s_mov_b32 s28, 0")
        a(f"v_add_u32 v18, {t*256*1024}, v15")
        yo = t * 4096
        a.label(f"L_ypoll{t}")
        a(f"ds_read_b32 v17, v9 offset:{t*1024}")
        a(f"ds_read_b32 v30, v12 offset:{yo+2048}")
        a(f"ds_read_b32 v31, v12 offset:{yo+3072}")
        a(f"ds_read_b32 v28, v12 offset:{yo}")
        a(f"ds_read_b32 v29, v12 offset:{yo+1024}")
        a("s_add_u32 s28, s28, 1")
        a("s_waitcnt lgkmcnt(4)")
        a("v_cmp_ne_u32 vcc, 1, v17")
        poll_guard("s28", "0x400000", f"L_ygo{t}")
        a(f"s_cbranch_vccz L_ygo{t}")
        a("s_waitcnt lgkmcnt(0)")
        a("s_sleep 1")
        a(f"s_branch L_ypoll{t}")
        a.label(f"L_ygo{t}")
        a("s_waitcnt lgkmcnt(2)")
        round_pair(a, 30, 30, 41)
        a(f"v_add_f32 v30, v30, v{P+2}")
        a(f"v_add_f32 v31, v31, v{P+3}")
        round_pair(a, 30, 30, 41)
        a(f"v_mul_f32 v30, v30, v{P+4}")
        a(f"v_mul_f32 v31, v31, v{P+4}")
        a("s_waitcnt lgkmcnt(0)")
        a(f"v_fmac_f32 v28, v{R}, v24")
        a(f"v_fmac_f32 v29, v{R+1}, v25")
        round_pair(a, 30, 30, 41)
        a(f"v_fmac_f32 v30, v28, v{P}")
        a(f"v_fmac_f32 v31, v29, v{P+1}")
        a("v_cvt_pk_bf16_f32 v19, v30, v31")
        a("global_store_dword v18, v19, s[36:37]")
        if t + 2 < 8:
            prework(t + 2)
        if t == 3:
            stamp(11)
    if st:
        a("s_waitcnt vmcnt(0)")
    stamp(12)
    a.label("L_fin")
    if st:
        n = 13
        a("s_waitcnt lgkmcnt(0)")
        a("s_lshl_b32 s58, s2, 3")
        a("s_add_u32 s58, s58, s14")
        a("s_lshl_b32 s58, s58, 6")
        a(f"s_add_u32 s58, s58, {STAMP_OFF}")
        a("v_mov_b32 v1, s58")
        a("s_mov_b64 exec, 1")
        for i in range(n):
            a(f"v_mov_b32 v2, s{76+2*i}")
            a(f"global_store_dword v1, v2, s[34:35] offset:{4*i}")
        a("s_mov_b64 exec, -1")
    a.label("L_end")
    a("s_endpgm")
    return kernel_wrap(name, a.text(), vgpr=256)


def full_source(**kw):
    hdr = open("gated_mix__ssm_conv_h3__ssm_conv_s4__prompt.s.ref").read().split("; @launch")[0]
    src = hdr + f"; @launch grid=(256,1,1) block=(512,1,1) lds={LDS_TOTAL}\n"
    src += '.amdgcn_target "amdgcn-amd-amdhsa--gfx950"\n'
    src += gen_fused(KN, **kw)
    return src


if __name__ == "__main__":
    out = sys.argv[1]
    kw = {}
    for x in sys.argv[2:]:
        k, v = x.split("=")
        kw[k] = {"0": False, "1": True}.get(v, v)
    open(out, "w").write(full_source(**kw))
```

```python
import sys
from gen import Asm, vr, sr, kernel_wrap, KA, KN, XKV_OFF, XQ_OFF, G_OFF, KCOPY, KUNIT, XUNIT, round_pair, stage_chunk_write
from gen_prep import fbits, zpow, dpp_reduce, L2E_HI, L2E_LO, LN2, TABROW, TABCH
from sched import Stream, order_v3, order_v4, order_v5

KBASE = 0
TBASE = 2 * KUNIT
R2 = 4 * KUNIT
XBASE = R2
YBASE = XBASE + 4 * XUNIT
FBASE = YBASE + 32768
TAB = R2
KTAB = TAB + 2 * TABCH
NBASE = KTAB + 2 * 1536
LDS_TOTAL = NBASE + 64
STAMP_OFF = 16 << 20
FL_OFF = 7 << 20


def gen_fused(name, st=0, scx="sc1", scl="sc1", stream_kw=None, pf=False, pfwave=7, hprio=0, order=3, b1h=-1, pprio=0):
    a = Asm()
    st = int(st)

    def stamp(i):
        if st == 1 or (st > 1 and (st >> (i + 1)) & 1):
            a(f"s_memrealtime s[{76+2*i}:{77+2*i}]")

    def cmul2(d, x, y, ny):
        a(f"v_mul_f32 {vr(d)}, {vr(x)}, {vr(y)}")
        a(f"v_mul_f32 {vr(d+1)}, {vr(x)}, {vr(y+1)}")
        a(f"v_fmac_f32 {vr(d)}, {vr(x+1)}, {vr(ny)}")
        a(f"v_fmac_f32 {vr(d+1)}, {vr(x+1)}, {vr(y)}")

    def neg(d, s):
        a(f"v_xor_b32 {vr(d)}, 0x80000000, {vr(s)}")

    def wr_u(addr, x, row, t):
        a(f"v_cvt_pk_f16_f32 {vr(t)}, {vr(x)}, -{vr(x+1)}")
        a(f"ds_write_b32 {vr(addr)}, {vr(t)} offset:{row*TABROW}")

    def wr_v(addr, x, r, t):
        a(f"v_cvt_pk_f16_f32 {vr(t)}, {vr(x)}, {vr(x+1)}")
        a(f"ds_write_b32 {vr(addr)}, {vr(t)} offset:{(48+r)*TABROW}")

    def front_fix(vD, vT, vLds):
        for j in range(16):
            a(f"v_mov_b32 {vr(vT+j)}, 0")
        a(f"v_subrev_u32 {vr(vT+16)}, 32, {vr(vLds)}")
        a(f"v_lshlrev_b32 {vr(vT+7)}, 16, {vr(vD)}")
        a(f"v_mov_b32 {vr(vT+11)}, {vr(vD)}")
        a(f"v_lshlrev_b32 {vr(vT+14)}, 16, {vr(vD)}")
        a(f"v_alignbit_b32 {vr(vT+15)}, {vr(vD+1)}, {vr(vD)}, 16")
        for c in range(4):
            a(f"ds_write_b128 {vr(vT+16)}, {vr(vT,4)} offset:{c*KCOPY}")
        for c in range(4):
            a(f"ds_write_b128 {vr(vT+16)}, {vr(vT+4*c,4)} offset:{c*KCOPY+16}")

    def poll_guard(cnt_reg, lim, done):
        a(f"s_cmp_gt_u32 {cnt_reg}, {lim}")
        a(f"s_cbranch_scc1 {done}")

    def gather_addr():
        a("v_and_b32 v206, 255, v0")
        a("v_lshlrev_b32 v206, 3, v206")
        a("v_lshrrev_b32 v207, 8, v0")
        a(f"v_mul_u32_u24 v207, 1536, v207")
        a(f"v_add_u32 v207, {KTAB}, v207")
        a("v_mov_b32 v208, 127")
        for e in range(0, 12, 2):
            a(f"v_add_u32 v209, {e}, v206")
            a(f"v_add_u32 v210, {e+1}, v206")
            a("v_cvt_f32_u32 v211, v209")
            a("v_cvt_f32_u32 v212, v210")
            a("v_cvt_pk_bf16_f32 v211, v211, v212")
            a("v_and_b32 v212, 0xffff, v211")
            a("v_lshrrev_b32 v211, 16, v211")
            a("v_subrev_u32 v212, 17024, v212")
            a("v_subrev_u32 v211, 17024, v211")
            a("v_med3_i32 v212, v209, v208, v212")
            a("v_med3_i32 v211, v210, v208, v211")
            a(f"v_lshl_add_u32 v{140+e}, v212, 1, v207")
            a(f"v_lshl_add_u32 v{141+e}, v211, 1, v207")
        a("v_lshrrev_b32 v210, 8, v0")
        a(f"v_mul_u32_u24 v210, {KUNIT}, v210")
        a("v_and_b32 v211, 255, v0")
        a("v_lshl_add_u32 v210, v211, 4, v210")
        a(f"v_add_u32 v52, {KBASE+32+2*KUNIT}, v210")

    stamp(0)
    a("s_cmp_ge_u32 s2, 256")
    a("s_cbranch_scc1 L_end")
    a("s_load_dwordx8 s[4:11], s[0:1], 0")
    a("s_load_dwordx4 s[40:43], s[0:1], 32")
    a("s_load_dwordx16 s[16:31], s[0:1], 56")
    a("s_load_dwordx2 s[32:33], s[0:1], 120")
    a("s_load_dwordx4 s[36:39], s[0:1], 128")
    a("s_load_dwordx2 s[34:35], s[0:1], 144")
    a("v_lshrrev_b32 v1, 6, v0")
    a("v_and_b32 v2, 63, v0")
    a("v_readfirstlane_b32 s14, v1")
    a("s_and_b32 s12, s2, 7")
    a("s_lshr_b32 s13, s2, 3")
    a("s_lshl_b32 s15, s12, 5")
    a("s_add_u32 s15, s15, s13")
    a("s_lshl_b32 s66, s15, 2")
    a("v_lshlrev_b32 v53, 4, v2")
    if pf:
        a(f"s_cmp_lg_u32 s14, {pfwave}")
        a("s_cbranch_scc1 L_nopf")
        a("s_getpc_b64 s[98:99]")
        a.label("L_pc")
        a("v_lshlrev_b32 v200, 7, v2")
        a("v_mov_b32 v205, s99")
        a("v_add_u32 v201, 8192, v200")
        a("v_min_u32 v201, L_end-L_pc, v201")
        a("v_add_co_u32 v202, vcc, s98, v200")
        a("v_addc_co_u32 v203, vcc, 0, v205, vcc")
        a("v_add_co_u32 v204, vcc, s98, v201")
        a("v_addc_co_u32 v205, vcc, 0, v205, vcc")
        a("global_load_dword v214, v[202:203], off")
        a("global_load_dword v215, v[204:205], off")
        a.label("L_nopf")
    a("s_cmp_lt_u32 s14, 4")
    a("s_cbranch_scc1 L_Tfront")
    if int(pprio):
        a(f"s_setprio {int(pprio)}")
    a("s_lshl_b32 s60, s12, 7")
    a("s_lshl_b32 s61, s13, 16")
    a("s_add_u32 s62, s60, s61")
    a("v_bfe_u32 v3, v0, 4, 4")
    a("v_and_b32 v54, 15, v0")
    a("v_lshlrev_b32 v55, 12, v3")
    a("v_lshlrev_b32 v56, 3, v54")
    a("v_add3_u32 v55, v55, v56, s62")
    a("v_subrev_u32 v56, 1024, v55")
    a("v_subrev_u32 v57, 2048, v55")
    a("v_subrev_u32 v58, 3072, v55")
    a("v_lshlrev_b32 v59, 5, v54")
    a("s_lshl_b32 s63, s12, 9")
    a("v_add_u32 v59, s63, v59")
    a("s_waitcnt lgkmcnt(0)")
    stamp(1)
    for (srd, p) in ((44, 4), (48, 6), (52, 8)):
        a(f"s_mov_b32 s{srd}, s{p}")
        a(f"s_mov_b32 s{srd+1}, s{p+1}")
        a(f"s_mov_b32 s{srd+2}, {2<<20}")
        a(f"s_mov_b32 s{srd+3}, 0x20000")
    a("buffer_load_dwordx2 v[12:13], v58, s[48:51], 0 offen")
    a("buffer_load_dwordx2 v[14:15], v57, s[48:51], 0 offen")
    a("buffer_load_dwordx2 v[16:17], v56, s[48:51], 0 offen")
    for j in range(4):
        a(f"buffer_load_dwordx2 v[{18+2*j}:{19+2*j}], v55, s[48:51], 0 offen offset:{1024*j}")
    a("global_load_dwordx4 v[34:37], v59, s[10:11]")
    a("global_load_dwordx4 v[38:41], v59, s[10:11] offset:16")
    for j in range(4):
        a(f"buffer_load_dwordx2 v[{26+2*j}:{27+2*j}], v55, s[52:55], 0 offen offset:{1024*j}")
    for j in range(4):
        a(f"buffer_load_dwordx2 v[{4+2*j}:{5+2*j}], v55, s[44:47], 0 offen offset:{1024*j}")
    a("s_load_dword s68, s[42:43], s66")
    a("s_load_dword s69, s[30:31], s66")
    a("v_lshlrev_b32 v60, 1, v3")
    a("v_sub_u32 v60, 30, v60")
    a("v_lshrrev_b32 v61, 2, v60")
    a("v_and_b32 v62, 7, v54")
    a("v_xor_b32 v61, v61, v62")
    a("v_lshlrev_b32 v61, 4, v61")
    a("v_and_b32 v60, 3, v60")
    a("v_lshl_add_u32 v61, v60, 2, v61")
    a("v_lshl_add_u32 v42, v54, 9, v61")
    a(f"v_add_u32 v42, {TBASE}, v42")
    a("v_bfe_u32 v60, v0, 3, 5")
    a("v_and_b32 v61, 7, v0")
    a("v_lshrrev_b32 v62, 2, v60")
    a("v_xor_b32 v62, v61, v62")
    a("v_lshlrev_b32 v62, 4, v62")
    a("v_lshl_add_u32 v43, v60, 7, v62")
    a(f"v_add_u32 v43, {TBASE}, v43")
    a("v_lshlrev_b32 v60, 12, v60")
    a("v_lshl_add_u32 v44, v61, 4, v60")
    a("s_lshl_b32 s61, s12, 18")
    a("s_lshl_b32 s3, s13, 7")
    a("s_sub_u32 s61, s61, s3")
    a("s_add_u32 s61, s61, 3968")
    a("v_add_u32 v44, s61, v44")
    a("v_add_u32 v45, 0x20000, v44")
    a(f"s_add_u32 s70, s34, {XKV_OFF}")
    a("s_addc_u32 s71, s35, 0")
    a(f"s_add_u32 s72, s34, {XQ_OFF}")
    a("s_addc_u32 s73, s35, 0")
    a("s_lshl_b32 s61, s15, 13")
    a("s_add_u32 s56, s40, s61")
    a("s_addc_u32 s57, s41, 0")
    a("s_mov_b32 s58, 8192")
    a("s_mov_b32 s59, 0x20000")
    a("v_and_b32 v46, 255, v0")
    a("v_lshlrev_b32 v46, 4, v46")
    a("v_add_u32 v47, 4096, v46")
    a(f"v_add_u32 v48, {KBASE+32}, v46")
    a(f"v_add_u32 v49, {KUNIT}, v48")
    gather_addr()
    a("s_mov_b32 s62, 0x05040100")
    a("s_mov_b32 s63, 0x07060302")
    KU, W, AC, VU = 60, 88, 104, 120
    a("s_waitcnt vmcnt(10)")
    for row in range(7):
        for e in range(2):
            src = 12 + 2 * row + e
            a(f"v_lshlrev_b32 v{KU+4*row+2*e}, 16, v{src}")
            a(f"v_and_b32 v{KU+4*row+2*e+1}, 0xffff0000, v{src}")
    a("s_waitcnt vmcnt(8)")
    for e in range(2):
        s0, s1, s2_, s3 = 34 + 4 * e, 35 + 4 * e, 36 + 4 * e, 37 + 4 * e
        a(f"v_lshlrev_b32 v{W+0+2*e}, 16, v{s0}")
        a(f"v_lshlrev_b32 v{W+0+2*e+1}, 16, v{s2_}")
        a(f"v_and_b32 v{W+4+2*e}, 0xffff0000, v{s0}")
        a(f"v_and_b32 v{W+4+2*e+1}, 0xffff0000, v{s2_}")
        a(f"v_lshlrev_b32 v{W+8+2*e}, 16, v{s1}")
        a(f"v_lshlrev_b32 v{W+8+2*e+1}, 16, v{s3}")
        a(f"v_and_b32 v{W+12+2*e}, 0xffff0000, v{s1}")
        a(f"v_and_b32 v{W+12+2*e+1}, 0xffff0000, v{s3}")
    chains = [(row, e) for row in range(4) for e in range(2)]
    def acc(row, e): return AC + 4 * row + 2 * e
    for (row, e) in chains:
        a(f"v_pk_mul_f32 {vr(acc(row,e),2)}, {vr(KU+4*(row+0)+2*e,2)}, {vr(W+12+2*e,2)}")
    for j in (2, 1, 0):
        for (row, e) in chains:
            a(f"v_pk_fma_f32 {vr(acc(row,e),2)}, {vr(KU+4*(row+3-j)+2*e,2)}, {vr(W+4*j+2*e,2)}, {vr(acc(row,e),2)}")
    a("s_waitcnt vmcnt(4)")
    stamp(2)
    for row in range(4):
        for e in range(2):
            src = 26 + 2 * row + e
            a(f"v_lshlrev_b32 v{VU+4*row+2*e}, 16, v{src}")
            a(f"v_and_b32 v{VU+4*row+2*e+1}, 0xffff0000, v{src}")
    for (row, e) in chains:
        a(f"v_pk_mul_f32 {vr(acc(row,e),2)}, {vr(acc(row,e),2)}, {vr(VU+4*row+2*e,2)}")
    for j in range(4):
        e, x = j >> 1, j & 1
        a(f"v_cvt_pk_bf16_f32 v{60+2*j}, v{acc(3,e)+x}, v{acc(2,e)+x}")
        a(f"v_cvt_pk_bf16_f32 v{61+2*j}, v{acc(1,e)+x}, v{acc(0,e)+x}")
    for j in range(4):
        a(f"ds_write_b64 v42, v[{60+2*j}:{61+2*j}] offset:{j*128}")
    a("s_waitcnt vmcnt(0)")
    for j in range(4):
        e, x = j >> 1, j & 1
        a(f"v_perm_b32 v{68+2*j}, v{4+2*2+e}, v{4+2*3+e}, s{62+x}")
        a(f"v_perm_b32 v{69+2*j}, v{4+2*0+e}, v{4+2*1+e}, s{62+x}")
    for j in range(4):
        a(f"ds_write_b64 v42, v[{68+2*j}:{69+2*j}] offset:{8192 + j*128}")
    a("s_waitcnt lgkmcnt(0)")
    a("s_barrier")
    stamp(3)
    a("ds_read_b128 v[112:115], v43")
    a("ds_read_b128 v[116:119], v43 offset:8192")
    a("ds_read_b128 v[120:123], v43 offset:4096")
    a("ds_read_b128 v[124:127], v43 offset:12288")
    a("s_waitcnt lgkmcnt(3)")
    a(f"global_store_dwordx4 v44, v[112:115], s[70:71] {scx}")
    a("s_waitcnt lgkmcnt(2)")
    a(f"global_store_dwordx4 v44, v[116:119], s[72:73] {scx}")
    a("s_waitcnt lgkmcnt(1)")
    a(f"global_store_dwordx4 v45, v[120:123], s[70:71] {scx}")
    a("s_waitcnt lgkmcnt(0)")
    a(f"global_store_dwordx4 v45, v[124:127], s[72:73] {scx}")
    a("buffer_load_dwordx4 v[20:23], v46, s[56:59], 0 offen")
    a("buffer_load_dwordx2 v[24:25], v46, s[56:59], 0 offen offset:16")
    a("buffer_load_dwordx4 v[32:35], v47, s[56:59], 0 offen")
    a("buffer_load_dwordx2 v[36:37], v47, s[56:59], 0 offen offset:16")
    stamp(4)
    a("s_branch L_front_done")

    a.label("L_Tfront")
    a("s_memrealtime s[70:71]")
    a("s_and_b32 s64, s14, 1")
    a("s_lshr_b32 s65, s14, 1")
    for j in range(40, 50):
        a(f"v_mov_b32 v{j}, 0")
    a("s_lshl_b32 s61, s15, 1")
    a("s_add_u32 s61, s61, s64")
    a("s_lshl_b32 s61, s61, 8")
    a("s_lshl_b32 s3, s65, 7")
    a("v_lshlrev_b32 v68, 1, v2")
    a("v_add_u32 v69, s61, v68")
    a("v_add_u32 v68, s3, v69")
    a("v_xor_b32 v69, 128, v68")
    a("s_lshl_b32 s60, s2, 3")
    a("s_lshl_b32 s3, s14, 1")
    a("s_add_u32 s60, s60, s3")
    a("s_lshl_b32 s3, s60, 10")
    a("v_add_u32 v54, s3, v53")
    a("s_waitcnt lgkmcnt(0)")
    stamp(1)
    a("s_load_dword s67, s[28:29], s66")
    for j, p in enumerate((16, 18, 20, 22, 24, 26)):
        a(f"global_load_short_d16_hi v{40+j}, v68, s[{p}:{p+1}]")
    for j, p in enumerate((20, 22, 24, 26)):
        a(f"global_load_short_d16_hi v{46+j}, v69, s[{p}:{p+1}]")
    a("s_or_b32 s3, s2, s14")
    a("s_cmp_lg_u32 s3, 0")
    a("s_cbranch_scc1 L_nononce")
    a("s_memrealtime s[56:57]")
    a("v_mov_b32 v136, 0")
    a("s_waitcnt lgkmcnt(0)")
    a("s_or_b32 s56, s56, 1")
    a("v_mov_b32 v137, s56")
    a("s_mov_b64 exec, 1")
    a("global_store_dword v136, v137, s[38:39] sc1")
    a("s_mov_b64 exec, -1")
    a.label("L_nononce")
    gather_addr()
    a("s_waitcnt vmcnt(0) lgkmcnt(0)")
    stamp(2)
    a("s_cmp_lg_u32 s14, 1")
    a("s_cbranch_scc1 L_nn0")
    a("v_mov_b32 v136, 0")
    a("global_load_dword v137, v136, s[38:39] sc1")
    a.label("L_nn0")
    a("s_lshl_b32 s3, s67, 16")
    a("s_and_b32 s61, s67, 0xffff0000")
    a("s_cmp_eq_u32 s64, 0")
    a("s_cselect_b32 s3, s3, s61")
    a("v_mov_b32 v60, s3")
    a(f"v_mul_f32 v61, 0x{L2E_HI:08x}, v60")
    a(f"s_mov_b32 s61, 0x{L2E_HI:08x}")
    a("v_fma_f32 v62, v60, s61, -v61")
    a(f"v_mov_b32 v63, 0x{L2E_LO:08x}")
    a("v_fmac_f32 v62, v60, v63")
    a("v_exp_f32 v61, v61")
    a(f"v_mul_f32 v62, 0x{LN2:08x}, v62")
    a("v_fma_f32 v61, v61, v62, v61")
    a("v_cvt_pk_bf16_f32 v61, v61, v61")
    a("v_and_b32 v61, 0xffff0000, v61")
    a("v_mul_f32 v62, v61, v40")
    a("v_mul_f32 v63, v61, v41")
    a(f"v_mul_f32 v62, 0x{L2E_HI:08x}, v62")
    a("v_mul_f32 v63, 0.15915494, v63")
    for (dst, b, cc) in ((64, 42, 44), (66, 46, 48)):
        a(f"v_mul_f32 v68, v61, v{b}")
        a(f"v_mul_f32 v69, v61, v{b+1}")
        neg(70, 69)
        cmul2(dst, cc, 68, 70)
    a("v_max_f32 v68, |v64|, |v65|")
    a("v_max3_f32 v68, |v66|, |v67|, v68")
    zpow(a, 74, 75, 62, 63, 128, 70, 71)
    dpp_reduce(a, "v_max_f32", 68)
    neg(76, 75)
    a("v_readlane_b32 s74, v68, 63")
    a(f"s_mul_i32 s75, s64, {TABCH}")
    a(f"s_max_u32 s74, s74, {fbits(1e-30)}")
    a("v_mov_b32 v68, s74")
    a("v_rcp_f32 v69, v68")
    a(f"s_add_u32 s75, s75, {TAB}")
    a("s_lshl_b32 s3, s65, 8")
    a("s_add_u32 s3, s3, s75")
    a("v_mul_f32 v64, v64, v69")
    a("v_mul_f32 v65, v65, v69")
    a("v_lshlrev_b32 v72, 2, v2")
    a("v_add_u32 v72, s3, v72")
    a("s_lshl_b32 s3, s64, 2")
    a(f"s_add_u32 s3, s3, {NBASE+4}")
    a("v_mov_b32 v69, s3")
    a("ds_write_b32 v69, v68")
    grow = {0: 0, 1: 8, 2: 16, 3: 20, 4: 24, 5: 26, 6: 28, 7: 30}
    for h in range(8, 17):
        grow[h] = 32 + h - 8
    zpow(a, 78, 79, 62, 63, 8, 70, 71)
    neg(80, 79)
    ZB = 100
    def Z(d): return ZB + 4 * (d - 1)
    zpow(a, Z(1), Z(1) + 1, 62, 63, 1, 70, 71)
    neg(Z(1) + 2, Z(1) + 1)
    for (d, x, y) in ((2, 1, 1), (3, 2, 1), (4, 2, 2), (5, 4, 1), (6, 4, 2), (7, 4, 3)):
        cmul2(Z(d), Z(x), Z(y), Z(y) + 2)
        neg(Z(d) + 2, Z(d) + 1)
    a("v_mov_b32 v82, 1.0")
    a("v_mov_b32 v83, 0")
    wr_v(72, 82, 0, 73)
    wr_v(72, 78, 1, 77)
    cv, cg = 78, 64
    tog = 0
    for h in range(0, 17):
        if h > 0:
            ng = 86 if cg != 86 else 88
            cmul2(ng, cg, 74, 76)
            cg = ng
        if 1 <= h <= 14:
            nv = 82 if cv != 82 else 84
            cmul2(nv, cv, 78, 80)
            cv = nv
        wr_u(72, cg, grow[h], 73)
        if 1 <= h <= 14:
            wr_v(72, cv, h + 1, 77)
        if h < 2:
            ds = [(d, grow[h] + d) for d in range(1, 8)]
        elif h < 4:
            ds = [(2, grow[h] + 1), (4, grow[h] + 2), (6, grow[h] + 3)]
        elif h < 8:
            ds = [(4, grow[h] + 1)]
        else:
            ds = []
        for (d, row) in ds:
            dst = 90 + 2 * tog
            cmul2(dst, cg, Z(d), Z(d) + 2)
            wr_u(72, dst, row, 94 + tog)
            tog ^= 1
        if h == int(b1h):
            a("s_barrier")
    a("s_cmp_lg_u32 s14, 1")
    a("s_cbranch_scc1 L_nonce_done")
    a("v_mov_b32 v136, 0")
    a("s_mov_b32 s28, 0")
    a("s_waitcnt vmcnt(0)")
    a.label("L_nonce_poll")
    a("v_readfirstlane_b32 s3, v137")
    a("s_add_u32 s28, s28, 1")
    poll_guard("s28", "0x100000", "L_nonce_got")
    a("s_cmp_eq_u32 s3, 0")
    a("s_cbranch_scc1 L_nonce_retry")
    a("s_sub_i32 s61, s70, s3")
    a("s_cmp_lt_i32 s61, 500")
    a("s_cbranch_scc1 L_nonce_got")
    a("s_cmp_gt_u32 s28, 24")
    a("s_cbranch_scc1 L_nonce_got")
    a.label("L_nonce_retry")
    a("global_load_dword v137, v136, s[38:39] sc1")
    a("s_waitcnt vmcnt(0)")
    a("s_branch L_nonce_poll")
    a.label("L_nonce_got")
    a(f"v_mov_b32 v136, {NBASE}")
    a("ds_write_b32 v136, v137")
    a.label("L_nonce_done")
    stamp(3)
    if int(b1h) < 0:
        a("s_waitcnt lgkmcnt(0)")
        a("s_barrier")
    stamp(4)
    a("global_load_dwordx4 v[4:7], v54, s[4:5]")
    a("global_load_dwordx4 v[8:11], v54, s[4:5] offset:1024")
    a("global_load_dwordx4 v[12:15], v53, s[32:33]")

    a.label("L_front_done")
    if int(pprio):
        a("s_setprio 0")
    if int(b1h) >= 0:
        a("s_waitcnt lgkmcnt(0)")
        a("s_barrier")
    a(f"v_mov_b32 v135, {NBASE}")
    a("ds_read_b96 v[132:134], v135")
    a("s_cmp_ge_u32 s14, 6")
    a("s_cbranch_scc1 L_jobdone")
    a("s_and_b32 s64, s14, 1")
    a("s_lshr_b32 s3, s14, 1")
    a(f"s_mul_i32 s75, s64, {TABCH}")
    a(f"s_add_u32 s75, s75, {TAB}")
    a("v_and_b32 v60, 15, v2")
    a("v_lshrrev_b32 v61, 4, v2")
    a(f"v_mul_u32_u24 v62, {TABROW}, v60")
    a("v_lshl_add_u32 v62, v61, 4, v62")
    a("v_add_u32 v62, s75, v62")
    a(f"s_mul_i32 s61, s3, {16*TABROW}")
    a("v_add_u32 v63, s61, v62")
    for kk in range(8):
        a(f"ds_read_b128 {vr(80+4*kk,4)}, v63 offset:{64*kk}")
        a(f"ds_read_b128 {vr(168+4*kk,4)}, v62 offset:{48*TABROW + 64*kk}")
    for kk in range(8):
        a(f"s_waitcnt lgkmcnt({14-2*kk})")
        if kk == 0:
            a("v_readfirstlane_b32 s74, v133")
            a("v_readfirstlane_b32 s75, v134")
        srcc = "0" if kk == 0 else "v[64:67]"
        a(f"v_mfma_f32_16x16x32_f16 v[64:67], {vr(80+4*kk,4)}, {vr(168+4*kk,4)}, {srcc}")
    a("s_cmp_eq_u32 s64, 0")
    a("s_cselect_b32 s74, s74, s75")
    a("s_mul_i32 s61, s64, 1536")
    a(f"s_add_u32 s61, s61, {KTAB}")
    a("s_nop 5")
    for r in range(4):
        a(f"v_mul_f32 v{64+r}, s74, v{64+r}")
    a("v_cvt_pk_bf16_f32 v68, v64, v65")
    a("v_cvt_pk_bf16_f32 v69, v66, v67")
    a("s_cmp_eq_u32 s3, 1")
    a("s_cbranch_scc1 L_job1")
    a("s_cmp_eq_u32 s3, 2")
    a("s_cbranch_scc1 L_job2")
    a("v_lshrrev_b32 v70, 1, v61")
    a("v_lshlrev_b32 v70, 8, v70")
    a("v_lshl_add_u32 v70, v60, 4, v70")
    a("v_and_b32 v71, 1, v61")
    a("v_lshl_add_u32 v70, v71, 3, v70")
    a("v_add_u32 v70, s61, v70")
    a("ds_write_b64 v70, v[68:69]")
    a("s_branch L_jobdone")
    a.label("L_job1")
    a("v_lshlrev_b32 v70, 7, v61")
    a("v_lshl_add_u32 v71, v60, 3, v70")
    a("v_lshl_add_u32 v72, v60, 2, v70")
    a("v_cmp_gt_u32 vcc, 2, v61")
    a("v_mov_b32 v73, 64")
    a("s_nop 1")
    a("v_cndmask_b32 v70, v72, v71, vcc")
    a("v_cndmask_b32 v73, v73, 4, vcc")
    a("v_add_u32 v70, s61, v70")
    a("v_add_u32 v73, v70, v73")
    a("ds_write_b32 v70, v68 offset:512")
    a("ds_write_b32 v73, v69 offset:512")
    a("s_branch L_jobdone")
    a.label("L_job2")
    a("v_lshlrev_b32 v70, 7, v61")
    a("v_lshl_add_u32 v70, v60, 1, v70")
    a("v_add_u32 v70, s61, v70")
    a("ds_write_b16 v70, v68 offset:1024")
    a("ds_write_b16_d16_hi v70, v68 offset:1056")
    a("ds_write_b16 v70, v69 offset:1088")
    a("ds_write_b16_d16_hi v70, v69 offset:1120")
    a.label("L_jobdone")
    a("s_waitcnt lgkmcnt(0)")
    a("v_readfirstlane_b32 s27, v132")
    a("s_barrier")
    stamp(5)
    for e in range(0, 12, 2):
        a(f"ds_read_u16 v{60+e//2}, v{140+e}")
        a(f"ds_read_u16_d16_hi v{68+e//2}, v{141+e}")
    a("s_and_b32 s20, s14, 3")
    a(f"s_mul_i32 s21, s20, {XUNIT}")
    a(f"s_add_u32 s21, s21, {XBASE}")
    a("s_and_b32 s3, s20, 1")
    a("s_lshl_b32 s61, s15, 1")
    a("s_add_u32 s61, s61, s3")
    a("s_lshl_b32 s61, s61, 12")
    a("s_lshr_b32 s3, s20, 1")
    a("s_cmp_eq_u32 s3, 0")
    a(f"s_cselect_b32 s3, {XKV_OFF}, {XQ_OFF}")
    a("s_add_u32 s61, s61, s3")
    a("s_lshr_b32 s3, s14, 2")
    a("s_lshl_b32 s3, s3, 11")
    a("s_add_u32 s61, s61, s3")
    a("s_add_u32 s22, s34, s61")
    a("s_addc_u32 s23, s35, 0")
    a("s_add_u32 s24, s21, s3")
    a("s_waitcnt lgkmcnt(0)")
    for e in range(6):
        a(f"v_and_b32 v{68+e}, 0xffff0000, v{68+e}")
        a(f"v_or_b32 v{60+e}, v{60+e}, v{68+e}")
    stage_chunk_write(a, 60, 80, 52)
    a("s_cmp_lg_u32 s20, 0")
    a("s_cbranch_scc1 L_nofront2")
    a("s_mov_b64 exec, 1")
    front_fix(60, 92, 52)
    a("s_mov_b64 exec, -1")
    a.label("L_nofront2")
    a("s_cmp_lt_u32 s14, 4")
    a("s_cbranch_scc1 L_Tmid")
    a("s_lshl_b32 s3, s2, 7")
    a("s_lshl_b32 s61, s14, 2")
    a("s_add_u32 s3, s3, s61")
    a(f"s_add_u32 s3, s3, {FL_OFF-16}")
    a("v_mov_b32 v134, s3")
    a("v_mov_b32 v135, s27")
    a("s_waitcnt vmcnt(4)")
    stamp(10)
    a("s_mov_b64 exec, 1")
    a("global_store_dword v134, v135, s[34:35] sc1")
    a("s_mov_b64 exec, -1")
    a("s_waitcnt vmcnt(3)")
    stage_chunk_write(a, 20, 112, 48)
    a("s_waitcnt vmcnt(1)")
    stage_chunk_write(a, 32, 124, 49)
    a("s_cmp_lg_u32 s14, 4")
    a("s_cbranch_scc1 L_nofront1")
    a("s_mov_b64 exec, 1")
    front_fix(20, 152, 48)
    front_fix(32, 172, 49)
    a("s_mov_b64 exec, -1")
    a.label("L_nofront1")
    a("s_sub_u32 s26, s14, 4")
    a("v_lshlrev_b32 v67, 8, v2")
    a(f"v_add_u32 v67, {FBASE}, v67")
    a("v_mov_b32 v72, 0")
    a("s_mov_b32 exec_hi, 0")
    a("ds_write_b32 v67, v72")
    a("s_mov_b64 exec, -1")
    a("s_lshl_b32 s3, s26, 6")
    a("v_add_u32 v10, s3, v2")
    a("v_lshrrev_b32 v11, 4, v10")
    a("v_bfe_u32 v12, v10, 2, 2")
    a("v_lshlrev_b32 v13, 1, v12")
    a("v_xor_b32 v11, v11, v13")
    a("v_lshlrev_b32 v11, 4, v11")
    a("v_lshl_add_u32 v11, v12, 8, v11")
    a("v_and_b32 v12, 3, v10")
    a("v_lshl_add_u32 v11, v12, 2, v11")
    a(f"v_add_u32 v12, {YBASE}, v11")
    a("v_lshlrev_b32 v13, 3, v10")
    a(f"v_add_u32 v13, {G_OFF}, v13")
    a("v_lshlrev_b32 v14, 1, v10")
    a(f"v_sub_u32 v14, {XBASE + 4094 - 3584}, v14")
    a("v_lshlrev_b32 v15, 10, v10")
    a("s_lshl_b32 s3, s15, 2")
    a("v_add_u32 v15, s3, v15")
    a("v_and_b32 v9, 3, v2")
    a("v_lshlrev_b32 v9, 8, v9")
    a(f"v_add_u32 v9, {FBASE}, v9")
    a("v_add_u32 v1, s24, v53")
    a("v_mov_b32 v7, v53")
    a("v_and_b32 v16, 31, v2")
    a("v_lshlrev_b32 v16, 10, v16")
    a("s_lshl_b32 s3, s12, 7")
    a(f"s_add_u32 s3, s3, {FL_OFF}")
    a("v_add_u32 v16, s3, v16")
    a("s_cmp_lg_u32 s14, 4")
    a("s_cbranch_scc1 L_nopoll0")
    a("s_mov_b32 exec_hi, 0")
    a("global_load_dwordx4 v[100:103], v16, s[34:35] sc1")
    a("s_mov_b64 exec, -1")
    a.label("L_nopoll0")
    stamp(6)
    a("s_waitcnt lgkmcnt(0)")
    a("s_branch L_mid_done")
    a.label("L_Tmid")
    a("s_waitcnt vmcnt(0)")
    for e in range(4):
        a(f"v_lshlrev_b32 v{60+2*e}, 16, v{12+e}")
        a(f"v_and_b32 v{61+2*e}, 0xffff0000, v{12+e}")
    for rr in range(2):
        B = 68 + 8 * rr
        for e in range(4):
            a(f"v_lshlrev_b32 v{B+2*e}, 16, v{4+4*rr+e}")
            a(f"v_and_b32 v{B+2*e+1}, 0xffff0000, v{4+4*rr+e}")
    for rr in range(2):
        B = 68 + 8 * rr
        for e in range(8):
            a(f"v_mul_f32 v{B+e}, v{B+e}, v{60+e}")
    for rr in range(2):
        B = 68 + 8 * rr
        for e in range(4):
            round_pair(a, B + 2 * e, B + 2 * e, 84 + e)
    for rr in range(2):
        B = 68 + 8 * rr
        for (x, y) in ((0, 1), (2, 3), (4, 5), (6, 7), (0, 2), (4, 6), (0, 4)):
            a(f"v_add_f32 v{B+x}, v{B+x}, v{B+y}")
    for sh in (1, 2, 4, 8):
        a("s_nop 0")
        for B in (68, 76):
            a(f"v_add_f32_dpp v{B}, v{B}, v{B} row_shr:{sh} row_mask:0xf bank_mask:0xf bound_ctrl:0")
    a("s_nop 0")
    for B in (68, 76):
        a(f"v_add_f32_dpp v{B}, v{B}, v{B} row_bcast:15 row_mask:0xa bank_mask:0xf")
    a("s_nop 0")
    for B in (68, 76):
        a(f"v_add_f32_dpp v{B}, v{B}, v{B} row_bcast:31 row_mask:0xc bank_mask:0xf")
    a("v_cvt_pk_bf16_f32 v68, v68, v76")
    a("v_and_b32 v76, 0xffff0000, v68")
    a("v_lshlrev_b32 v68, 16, v68")
    for B in (68, 76):
        a(f"v_mul_f32 v{B}, {fbits(-1.4426950408889634)}, v{B}")
    for B in (68, 76):
        a(f"v_exp_f32 v{B}, v{B}")
    a("s_nop 0")
    for B in (68, 76):
        a(f"v_add_f32 v{B}, 1.0, v{B}")
    for B in (68, 76):
        a(f"v_rcp_f32 v{B}, v{B}")
    a("s_nop 0")
    a("v_cvt_pk_bf16_f32 v68, v68, v76")
    a("v_and_b32 v18, 0xffff0000, v68")
    a("v_lshlrev_b32 v16, 16, v68")
    a("s_lshl_b32 s3, s60, 3")
    a(f"s_add_u32 s3, s3, {G_OFF}")
    a("v_mov_b32 v62, s3")
    a("v_mov_b32 v17, s27")
    a("v_mov_b32 v19, s27")
    a("s_mov_b32 exec_lo, 0")
    a("s_mov_b32 exec_hi, 0x80000000")
    a("global_store_dwordx2 v62, v[16:17], s[34:35] sc1")
    a("global_store_dwordx2 v62, v[18:19], s[34:35] offset:8 sc1")
    a("s_mov_b64 exec, -1")
    for j in range(4):
        a(f"v_mov_b32 v{72+j}, 0")
    a("v_add_u32 v67, s21, v53")
    a("s_mov_b32 exec_hi, 0")
    a("ds_write_b128 v67, v[72:75] offset:4096")
    a("s_mov_b64 exec, -1")
    a(f"s_mul_i32 s25, s20, {KUNIT}")
    a("v_and_b32 v31, 15, v2")
    a("v_lshrrev_b32 v32, 4, v2")
    a("v_add_u32 v33, 1, v31")
    a("v_and_b32 v34, 3, v33")
    a("v_lshrrev_b32 v33, 2, v33")
    a(f"v_mul_u32_u24 v34, {KCOPY}, v34")
    a("v_lshlrev_b32 v33, 3, v33")
    a("v_lshlrev_b32 v35, 4, v32")
    a("v_add3_u32 v34, v34, v33, v35")
    a("v_add_u32 v4, s25, v34")
    a("v_sub_u32 v33, 15, v31")
    a("v_lshlrev_b32 v33, 5, v33")
    a("v_add3_u32 v5, v33, v35, s21")
    a("v_lshlrev_b32 v33, 1, v32")
    a("v_xor_b32 v33, v31, v33")
    a("v_lshlrev_b32 v33, 4, v33")
    a("v_lshl_add_u32 v33, v32, 8, v33")
    a("s_lshl_b32 s3, s20, 10")
    a(f"s_add_u32 s3, s3, {YBASE}")
    a("v_add_u32 v6, s3, v33")
    a("s_lshl_b32 s3, s20, 8")
    a(f"s_add_u32 s3, s3, {FBASE}")
    a("v_lshlrev_b32 v3, 2, v2")
    a("v_add_u32 v3, s3, v3")
    a("v_add_u32 v1, s24, v53")
    a("v_mov_b32 v7, v53")
    a("v_mov_b32 v0, 1")
    stamp(6)
    a("s_waitcnt lgkmcnt(0)")
    a.label("L_mid_done")
    a(f"v_mov_b32 v136, {NBASE}")
    a("s_barrier")
    stamp(7)
    a("s_cmp_ge_u32 s14, 4")
    a("s_cbranch_scc1 L_helper_go")
    kw = dict(credit_per_slot=3.5, horizon=80, safe_slots=12)
    kw.update(stream_kw or {})
    strm = Stream(a, {3: order_v3(steps3=((0,), (1,), (2,), (3,))), 4: order_v4(), 5: order_v5()}[int(order)], 4, 5, 6, frag_base=40, nslots=54, acc_base=8,
                  preload=[('A', m) for m in range(32)], vF=3, vOne=0, **kw)
    strm.emit_preload()
    a("s_barrier")
    stamp(8)
    a(f"global_load_dwordx4 v[8:11], v7, s[22:23] {scl}")
    a(f"global_load_dwordx4 v[12:15], v7, s[22:23] offset:1024 {scl}")
    a("s_waitcnt vmcnt(1)")
    a("ds_write_b128 v1, v[8:11]")
    a("s_waitcnt vmcnt(0)")
    a("ds_write_b128 v1, v[12:15] offset:1024")
    a("s_waitcnt lgkmcnt(0)")
    a("s_barrier")
    stamp(9)
    info = strm.run()
    sys.stderr.write(f"stream: {info}\n")
    stamp(10)
    a("s_branch L_fin")

    a.label("L_helper_go")
    for j in range(20, 24):
        a(f"v_mov_b32 v{j}, 0")
    a("s_lshl_b32 s3, s68, 16")
    a("v_mov_b32 v24, s3")
    a("s_and_b32 s3, s68, 0xffff0000")
    a("v_mov_b32 v25, s3")
    a("s_lshl_b32 s3, s69, 16")
    a("v_mov_b32 v26, s3")
    a("s_and_b32 s3, s69, 0xffff0000")
    a("v_mov_b32 v27, s3")
    a("s_cmp_lg_u32 s14, 4")
    a("s_cbranch_scc1 L_gload")
    a("s_mov_b32 s28, 0")
    a("s_mov_b32 exec_hi, 0")
    a("global_load_dwordx4 v[104:107], v16, s[34:35] sc1")
    a.label("L_poll1")
    a("s_waitcnt vmcnt(1)")
    for (R, nxt) in ((100, None),):
        pass
    def chk(R):
        a(f"v_xor_b32 v108, s27, v{R}")
        a(f"v_xor_b32 v109, s27, v{R+1}")
        a(f"v_xor_b32 v110, s27, v{R+2}")
        a(f"v_xor_b32 v111, s27, v{R+3}")
        a("v_or3_b32 v108, v108, v109, v110")
        a("v_or_b32 v108, v108, v111")
        a("v_cmp_ne_u32 vcc, 0, v108")
    chk(100)
    a("s_add_u32 s28, s28, 1")
    poll_guard("s28", "0x100000", "L_poll1_done")
    a("s_cbranch_vccz L_poll1_done")
    a("global_load_dwordx4 v[100:103], v16, s[34:35] sc1")
    a("s_waitcnt vmcnt(1)")
    chk(104)
    a("s_cbranch_vccz L_poll1_done")
    a("global_load_dwordx4 v[104:107], v16, s[34:35] sc1")
    a("s_branch L_poll1")
    a.label("L_poll1_done")
    a("s_mov_b64 exec, -1")
    a.label("L_gload")
    a("s_barrier")
    stamp(8)
    a(f"global_load_dwordx4 v[40:43], v7, s[22:23] {scl}")
    a(f"global_load_dwordx4 v[44:47], v7, s[22:23] offset:1024 {scl}")
    for t in range(8):
        a(f"v_add_u32 v16, {t*2048}, v13")
        a(f"global_load_dwordx2 v[{48+2*t}:{49+2*t}], v16, s[34:35] sc1")
    a("s_waitcnt vmcnt(9)")
    a("ds_write_b128 v1, v[40:43]")
    a("s_waitcnt vmcnt(8)")
    a("ds_write_b128 v1, v[44:47] offset:1024")
    a("s_waitcnt lgkmcnt(0)")
    a("s_barrier")
    stamp(9)
    if int(hprio):
        a(f"s_setprio {int(hprio)}")
    a("s_waitcnt vmcnt(0)")
    a("s_mov_b32 s28, 0")
    a.label("L_poll2")
    a("v_xor_b32 v17, s27, v49")
    for t in range(1, 8):
        a(f"v_xor_b32 v16, s27, v{49+2*t}")
        a("v_or_b32 v17, v17, v16")
    a("v_cmp_ne_u32 vcc, 0, v17")
    a("s_add_u32 s28, s28, 1")
    poll_guard("s28", "0x100000", "L_poll2_done")
    a("s_cbranch_vccz L_poll2_done")
    for t in range(8):
        a(f"v_add_u32 v16, {t*2048}, v13")
        a(f"global_load_dwordx2 v[{48+2*t}:{49+2*t}], v16, s[34:35] sc1")
    a("s_waitcnt vmcnt(0)")
    a("s_branch L_poll2")
    a.label("L_poll2_done")
    PB = 64
    def PW(t): return PB + 8 * t
    for t in range(8):
        for j in range(4):
            a(f"v_mov_b32 v{128+4*t+j}, 0")
    def prework(tt):
        R = 128 + 4 * tt
        P = PW(tt)
        a(f"v_mul_f32 v{P+2}, v{R+2}, v26")
        a(f"v_mul_f32 v{P+3}, v{R+3}, v27")
        a(f"v_sub_f32 v{P+4}, 1.0, v{48+2*tt}")
        a(f"v_mul_f32 v{P}, v{R+2}, v{48+2*tt}")
        a(f"v_mul_f32 v{P+1}, v{R+3}, v{48+2*tt}")
        round_pair(a, P + 2, P + 2, 41)
        a(f"v_cvt_pk_bf16_f32 v42, v{P+4}, v{P+4}")
        a(f"v_and_b32 v{P+4}, 0xffff0000, v42")
    for t in range(8):
        xo = (7 - t) * 512
        R = 128 + 4 * t
        a(f"ds_read_u16_d16_hi v{R}, v14 offset:{xo}")
        a(f"ds_read_u16_d16_hi v{R+1}, v14 offset:{xo+XUNIT}")
        a(f"ds_read_u16_d16_hi v{R+2}, v14 offset:{xo+2*XUNIT}")
        a(f"ds_read_u16_d16_hi v{R+3}, v14 offset:{xo+3*XUNIT}")
    a("s_waitcnt lgkmcnt(0)")
    prework(0); prework(1)
    for t in range(8):
        P = PW(t)
        R = 128 + 4 * t
        a("s_mov_b32 s28, 0")
        a(f"v_add_u32 v18, {t*256*1024}, v15")
        yo = t * 4096
        a.label(f"L_ypoll{t}")
        a(f"ds_read_b32 v17, v9 offset:{t*1024}")
        a(f"ds_read_b32 v30, v12 offset:{yo+2048}")
        a(f"ds_read_b32 v31, v12 offset:{yo+3072}")
        a(f"ds_read_b32 v28, v12 offset:{yo}")
        a(f"ds_read_b32 v29, v12 offset:{yo+1024}")
        a("s_add_u32 s28, s28, 1")
        a("s_waitcnt lgkmcnt(4)")
        a("v_cmp_ne_u32 vcc, 1, v17")
        poll_guard("s28", "0x400000", f"L_ygo{t}")
        a(f"s_cbranch_vccz L_ygo{t}")
        a("s_waitcnt lgkmcnt(0)")
        a("s_sleep 1")
        a(f"s_branch L_ypoll{t}")
        a.label(f"L_ygo{t}")
        a("s_waitcnt lgkmcnt(2)")
        round_pair(a, 30, 30, 41)
        a(f"v_add_f32 v30, v30, v{P+2}")
        a(f"v_add_f32 v31, v31, v{P+3}")
        round_pair(a, 30, 30, 41)
        a(f"v_mul_f32 v30, v30, v{P+4}")
        a(f"v_mul_f32 v31, v31, v{P+4}")
        a("s_waitcnt lgkmcnt(0)")
        a(f"v_fmac_f32 v28, v{R}, v24")
        a(f"v_fmac_f32 v29, v{R+1}, v25")
        round_pair(a, 30, 30, 41)
        a(f"v_fmac_f32 v30, v28, v{P}")
        a(f"v_fmac_f32 v31, v29, v{P+1}")
        a("v_cvt_pk_bf16_f32 v19, v30, v31")
        a("global_store_dword v18, v19, s[36:37]")
        if t + 2 < 8:
            prework(t + 2)
        if t == 3:
            stamp(11)
    if st:
        a("s_waitcnt vmcnt(0)")
    stamp(12)
    a.label("L_fin")
    if st:
        n = 13
        a("s_waitcnt lgkmcnt(0)")
        a("s_lshl_b32 s58, s2, 3")
        a("s_add_u32 s58, s58, s14")
        a("s_lshl_b32 s58, s58, 6")
        a(f"s_add_u32 s58, s58, {STAMP_OFF}")
        a("v_mov_b32 v1, s58")
        a("s_mov_b64 exec, 1")
        for i in range(n):
            a(f"v_mov_b32 v2, s{76+2*i}")
            a(f"global_store_dword v1, v2, s[34:35] offset:{4*i}")
        a("s_mov_b64 exec, -1")
    a.label("L_end")
    a("s_endpgm")
    return kernel_wrap(name, a.text(), vgpr=256)


def full_source(**kw):
    hdr = open("gated_mix__ssm_conv_h3__ssm_conv_s4__prompt.s.ref").read().split("; @launch")[0]
    src = hdr + f"; @launch grid=(256,1,1) block=(512,1,1) lds={LDS_TOTAL}\n"
    src += '.amdgcn_target "amdgcn-amd-amdhsa--gfx950"\n'
    src += gen_fused(KN, **kw)
    return src


if __name__ == "__main__":
    out = sys.argv[1]
    kw = {}
    for x in sys.argv[2:]:
        k, v = x.split("=")
        kw[k] = {"0": False, "1": True}.get(v, v)
    open(out, "w").write(full_source(**kw))
```
